```python
import torch

def _softmax(x, axis=-1):
    return torch.softmax(x, dim=axis)
def _gelu(x):
    return torch.nn.functional.gelu(x, approximate="tanh")
def _silu(x):
    return torch.nn.functional.silu(x)
def _sigmoid(x):
    return torch.sigmoid(x)
def _layernorm(x, axis=-1, eps=1e-5):
    m = x.mean(dim=axis, keepdim=True)
    v = x.var(dim=axis, keepdim=True, unbiased=False)
    return (x - m) / torch.sqrt(v + eps)
def _scatter_add(tgt, idx, src, axis=0):
    return tgt.clone().index_add_(axis, idx, src)
def _segment_sum(src, seg, n):
    out = torch.zeros((n,) + src.shape[1:], dtype=src.dtype)
    return out.index_add_(0, seg, src)
def _pad(x, pw):
    flat = tuple(v for pair in reversed(pw) for v in pair)
    return torch.nn.functional.pad(x, flat)

kernel_name = 'concat_heads__softmax_full_mha__linear_attn_block__prompt'

def setup_inputs():

    _w = (lambda a: (lambda t: t.to(torch.bfloat16) if t.is_floating_point() else t)(torch.as_tensor(a)))
    def _A_setup():
        B, S, D = 1, 2048, 448
        return {
            "x": _w((lambda *s: torch.randn(*s, dtype=torch.bfloat16) * 0.2)(B, S, D)),
            "wqkv": _w((lambda *s: torch.randn(*s, dtype=torch.bfloat16) * 0.2)(D, 3 * D)),
            "wo": _w((lambda *s: torch.randn(*s, dtype=torch.bfloat16) * 0.05)(D, D)),
        }
    _A_in = _A_setup()

    def _B_setup():
        B, S, D = 1, 2048, 448
        return {
            "x": _w((lambda *s: torch.randn(*s, dtype=torch.bfloat16) * 0.05)(B, S, D)),
            "wqkv": _w((lambda *s: torch.randn(*s, dtype=torch.bfloat16) * 1.6)(D, 3 * D)),
            "wo": _w((lambda *s: torch.randn(*s, dtype=torch.bfloat16) * 0.05)(D, D)),
        }
    _B_in = _B_setup()

    return {
        "A_x": _A_in["x"],
        "A_wqkv": _A_in["wqkv"],
        "A_wo": _A_in["wo"],
        "B_x": _B_in["x"],
        "B_wqkv": _B_in["wqkv"],
        "B_wo": _B_in["wo"],
    }

def reference(A_x, A_wqkv, A_wo, B_x, B_wqkv, B_wo):
    def _A_ref(x, wqkv, wo):
        B, S, D = x.shape
        H = 16; Dh = D // H
        qkv = (lambda x, *d: x.permute(*d))((x @ wqkv).reshape(B, S, 3, H, Dh), 2, 0, 3, 1, 4)
        q, k, v = qkv[0], qkv[1], qkv[2]
        scale = Dh ** -0.5
        scores = torch.einsum("bhqd,bhkd->bhqk", q, k) * scale
        p = _softmax(scores, axis=-1)
        o = torch.einsum("bhqk,bhkd->bhqd", p, v)
        return (lambda x, *d: x.permute(*d))(o, 0, 2, 1, 3).reshape(B, S, D) @ wo

    def _B_ref(x, wqkv, wo):
        B, S, D = x.shape
        H = 16; Dh = D // H
        qkv = (lambda x, *d: x.permute(*d))((x @ wqkv).reshape(B, S, 3, H, Dh), 2, 0, 3, 1, 4)
        q, k, v = qkv[0], qkv[1], qkv[2]
        phi = lambda t: torch.where(t > 0, t + 1, torch.exp(t)) + 1e-6
        pq, pk = phi(q), phi(k)
        kv = torch.einsum("bhsd,bhse->bhde", pk, v)
        z = torch.einsum("bhsd->bhd", pk)
        num = torch.einsum("bhqd,bhde->bhqe", pq, kv)
        den = torch.einsum("bhqd,bhd->bhq", pq, z)[..., None] + 1e-6
        o = num / den
        return (lambda x, *d: x.permute(*d))(o, 0, 2, 1, 3).reshape(B, S, D) @ wo

    a = _A_ref(A_x, A_wqkv, A_wo)
    b = _B_ref(B_x, B_wqkv, B_wo)
    return torch.concatenate([a, b], axis=-1)
```

```python
import re
class Asm:
    def __init__(self):
        self.lines=[]
    def __call__(self, s):
        for l in s.split("\n"):
            l=l.strip()
            if l: self.lines.append(l)
    def text(self):
        out=[]
        for l in self.lines:
            if l.endswith(":") or l.startswith("."): out.append(l)
            else: out.append("  "+l)
        return "\n".join(out)+"\n"
def v(a,n=1): return f"v{a}" if n==1 else f"v[{a}:{a+n-1}]"
def s(a,n=1): return f"s{a}" if n==1 else f"s[{a}:{a+n-1}]"

TRANS=("v_exp_f32","v_log_f32","v_rcp_f32","v_rsq_f32","v_sqrt_f32","v_sin_f32","v_cos_f32","v_exp_f16","v_rcp_iflag_f32")
def regs(tok):
    tok=tok.strip()
    tok=tok.lstrip("-").replace("abs(","").replace(")","").replace("|","")
    m=re.fullmatch(r"([vsa])(\d+)",tok)
    if m: return {(m.group(1),int(m.group(2)))}
    m=re.fullmatch(r"([vsa])\[(\d+):(\d+)\]",tok)
    if m: return {(m.group(1),i) for i in range(int(m.group(2)),int(m.group(3))+1)}
    if tok=="vcc": return {("s",106),("s",107)}
    if tok=="exec": return {("s",126),("s",127)}
    if tok=="m0": return {("s",124)}
    return set()
def parse(l):
    l=l.split(";")[0].strip()
    if not l or l.endswith(":") or l.startswith("."): return None
    p=l.split(None,1)
    op=p[0]; rest=p[1] if len(p)>1 else ""
    ops=[x.strip() for x in rest.split(",")] if rest else []
    mods=""
    if ops:
        q=ops[-1].split(None,1)
        ops[-1]=q[0]
        if len(q)>1: mods=q[1]
    d=dict(op=op,ops=ops,mods=mods,text=l)
    R=[regs(o) for o in ops]
    w=set(); r=set()
    kind="other"
    if op.startswith("v_mfma"):
        kind="mfma"; w=R[0]; d["A"]=R[1]; d["B"]=R[2]; d["C"]=R[3]; r=R[1]|R[2]|R[3]
        d["passes"]=8 if "32x32" in op else 4
    elif op.startswith("v_cmp"):
        kind="valu"; w=R[0]; r=set().union(*R[1:])
    elif op.startswith("v_readfirstlane") or op.startswith("v_readlane"):
        kind="valu"; w=R[0]; r=set().union(*R[1:])
    elif op.startswith("v_permlane"):
        kind="valu"; w=R[0]|R[1]; r=R[0]|R[1]
    elif op.startswith("v_"):
        kind="valu"; w=R[0]; r=set().union(*R[1:]) if len(R)>1 else set()
        if op.startswith(("v_fmac","v_mac")) or "dpp" in op or "row_" in mods or "quad_perm" in mods: r|=R[0]
        if op.startswith("v_cndmask") and len(ops)==3: r|=regs("vcc")
        if op.startswith(("v_add_co","v_addc_co","v_sub_co")): w|=R[1]
    elif op.startswith(("buffer_load","global_load")):
        kind="vmem"
        if "lds" in mods.split() or op.startswith("global_load_lds"):
            r=set().union(*R); r|=regs("m0"); d["ldsdma"]=True
        else:
            w=R[0]; r=set().union(*R[1:])
    elif op.startswith(("buffer_store","global_store","buffer_atomic","global_atomic")):
        kind="vmem"; r=set().union(*R)
        d["store"]=True
        d["data"]=R[0] if op.startswith("buffer") else R[1]
    elif op.startswith("ds_read") or op.startswith("ds_bpermute") or op.startswith("ds_swizzle"):
        kind="ds"; w=R[0]; r=set().union(*R[1:])
    elif op.startswith("ds_"):
        kind="ds"; r=set().union(*R)
    elif op.startswith("s_"):
        kind="salu"
        if op.startswith(("s_cmp","s_cbranch","s_branch","s_waitcnt","s_nop","s_barrier","s_endpgm","s_setprio","s_sleep")):
            r=set().union(*R) if R else set()
        else:
            w=R[0] if R else set(); r=set().union(*R[1:]) if len(R)>1 else set()
            if "saveexec" in op: w|=regs("exec")
    d.update(kind=kind,w=w,r=r)
    return d
def isv(x): return {q for q in x if q[0] in "va"}
def iss(x): return {q for q in x if q[0]=="s"}
def check(lines, name=""):
    ins=[parse(l) for l in lines]
    ins=[i for i in ins if i]
    errs=[]
    n=len(ins)
    for i,p in enumerate(ins):
        dist=0
        for j in range(i+1,min(n,i+40)):
            c=ins[j]
            need=0
            if p["kind"]=="mfma":
                full=12 if p["passes"]==8 else 8
                if c["kind"]=="mfma":
                    if (c["A"]|c["B"])&p["w"]: need=max(need,full)
                    if c["C"]&p["w"] and not (c["C"]==p["w"] and c["passes"]==p["passes"]): need=max(need,full-2)
                    if c["w"]&p["w"] and not (c["C"]==p["w"]) : need=max(need,0)
                elif c["kind"] in("valu","vmem","ds"):
                    if (c["r"]|c["w"])&p["w"]: need=max(need,full)
                if c["kind"]=="valu" and c["w"]&p["C"]: need=max(need,7 if p["passes"]==8 else 3)
            if p["kind"]=="valu":
                if c["kind"]=="mfma" and c["r"]&isv(p["w"]): need=max(need,2)
                if p["op"].startswith(TRANS) and c["kind"]=="valu" and not c["op"].startswith(TRANS) and c["r"]&p["w"]: need=max(need,1)
                if c["kind"]=="valu" and (c["op"].startswith("v_permlane") or "dpp" in c["op"] or "row_" in c["mods"] or "quad_perm" in c["mods"]) and c["r"]&isv(p["w"]): need=max(need,2)
                if c["kind"]=="valu" and c["op"].startswith(("v_readfirstlane","v_readlane")) and c["r"]&isv(p["w"]): need=max(need,1)
                sw=iss(p["w"])
                if sw:
                    if c["kind"]=="valu" and c["r"]&sw: need=max(need,4 if c["op"].startswith(("v_readlane","v_writelane")) else 2)
                    if c["kind"]=="vmem" and c["r"]&sw: need=max(need,5)
                    if c["kind"]=="salu" and c["r"]&sw: need=max(need,1)
            if p["kind"]=="salu" and regs("m0")&p["w"] and c.get("ldsdma"): need=max(need,1)
            if p.get("store") and len(p["data"])>=3 and c["w"]&p["data"]: need=max(need,2 if c["kind"]=="valu" else 1)
            if need>dist: errs.append(f"[{name}] need {need} have {dist}: '{p['text']}' -> '{c['text']}'")
            if c["op"]=="s_nop": dist+=int(c["ops"][0],0)+1
            else: dist+=1
            if dist>=20: break
    return errs
```

```python
import struct, sys
from asmlib import *
def f2u(x): return struct.unpack("<I",struct.pack("<f",x))[0]
MB=1<<20
QF=0; KV=2*MB; PQ=6*MB; KVP=8*MB; NRM=9*MB; OF=10*MB; WS_SIZE=14*MB
LOG2E=1.4426950408889634
CS=28**-0.5*LOG2E
MF="v_mfma_f32_32x32x16_bf16"
def mfma(d,a,b,c=None):
    return f"{MF} {v(d,16)}, {v(a,4)}, {v(b,4)}, {v(d,16) if c is None else c}"
def srd(a,d,base,size):
    a(f"s_mov_b32 s{d}, s{base}\ns_and_b32 s{d+1}, s{base+1}, 0xffff\ns_mov_b32 s{d+2}, {size}\ns_mov_b32 s{d+3}, 0x20000")
def kd(name,vg,sg=96):
    acc=(vg+3)//4*4
    return f""".amdhsa_kernel {name}
  .amdhsa_next_free_vgpr {vg}
  .amdhsa_next_free_sgpr {sg}
  .amdhsa_accum_offset {acc}
  .amdhsa_group_segment_fixed_size 0
  .amdhsa_kernarg_size 72
  .amdhsa_user_sgpr_count 2
  .amdhsa_user_sgpr_kernarg_segment_ptr 1
  .amdhsa_system_sgpr_workgroup_id_x 1
.end_amdhsa_kernel
"""
def head(a,name):
    a(f".globl {name}\n.p2align 8\n.type {name},@function\n{name}:")
def rowmax_dpp(a,r):
    for m in ("quad_perm:[1,0,3,2]","quad_perm:[2,3,0,1]","row_half_mirror","row_mirror"):
        a("s_nop 1")
        a(f"v_max_f32_dpp v{r}, v{r}, v{r} {m} row_mask:0xf bank_mask:0xf")

def gen_k1():
    a=Asm(); N="k1_kernel"; head(a,N)
    a("s_cmp_ge_u32 s2, 256\ns_cbranch_scc1 K1_END")
    a("s_load_dwordx4 s[4:7], s[0:1], 0\ns_load_dwordx4 s[8:11], s[0:1], 24\ns_load_dwordx2 s[12:13], s[0:1], 64")
    a("v_lshrrev_b32 v2, 6, v0\nv_and_b32 v1, 63, v0")
    a("s_and_b32 s32, s2, 7\ns_lshr_b32 s33, s2, 3")
    a("v_readfirstlane_b32 s31, v2")
    a("s_and_b32 s28, s32, 1")
    a("s_lshr_b32 s32, s32, 1\ns_lshl_b32 s32, s32, 2\ns_and_b32 s29, s33, 3\ns_add_u32 s29, s29, s32")
    a("s_lshr_b32 s30, s33, 2")
    a("v_lshrrev_b32 v5, 3, v1\nv_and_b32 v6, 7, v1")
    a("s_lshl_b32 s34, s29, 7\ns_lshl_b32 s35, s31, 4\ns_add_u32 s34, s34, s35")
    a("v_add_u32 v7, s34, v5\nv_mul_u32_u24 v7, 896, v7")
    a("v_lshrrev_b32 v8, 1, v5\nv_xor_b32 v9, v6, v8\nv_lshl_add_u32 v2, v9, 4, v7")
    a("v_xor_b32 v9, 4, v9\nv_lshl_add_u32 v3, v9, 4, v7\nv_add_u32 v3, 7168, v3")
    a("s_lshl_b32 s35, s31, 3\nv_add_u32 v7, s35, v5\nv_mul_u32_u24 v7, 2688, v7")
    a("v_and_b32 v8, 1, v8\nv_lshlrev_b32 v8, 2, v8\nv_xor_b32 v9, v6, v8\nv_lshl_add_u32 v4, v9, 4, v7")
    a("s_mul_i32 s35, s30, 112\nv_add_u32 v4, s35, v4")
    a("s_lshl_b32 s36, s31, 11\ns_lshl_b32 s37, s31, 10\ns_add_u32 s37, s37, 16384")
    a("s_waitcnt lgkmcnt(0)")
    a("s_cmp_eq_u32 s28, 0\ns_cselect_b32 s4, s4, s8\ns_cselect_b32 s5, s5, s9\ns_cselect_b32 s6, s6, s10\ns_cselect_b32 s7, s7, s11")
    srd(a,16,4,2048*448*2); srd(a,20,6,448*1344*2); srd(a,24,12,WS_SIZE)
    def dma(st):
        b=(st%4)*40960
        a(f"s_mov_b32 s38, {st*128}")
        for i in range(2):
            a(f"s_add_u32 m0, s36, {b+i*1024}\ns_nop 0" if i else f"s_add_u32 m0, s36, {b+i*1024}\ns_mov_b32 s39, {st*172032}")
            a(f"buffer_load_dwordx4 v{2+i}, s[16:19], s38 offen lds")
        for pt in range(3):
            a(f"s_add_u32 m0, s37, {b+pt*8192}")
            a(f"s_mov_b32 s39, {st*172032+pt*896}")
            a(f"buffer_load_dwordx4 v4, s[20:23], s39 offen lds")
    for st in range(4): dma(st)
    a("s_and_b32 s40, s31, 3\ns_lshr_b32 s41, s31, 2")
    a("v_and_b32 v5, 31, v1\nv_lshrrev_b32 v6, 5, v1")
    a("s_lshl_b32 s34, s40, 5\nv_add_u32 v7, s34, v5")
    a("v_bfe_u32 v8, v7, 1, 3\nv_xor_b32 v8, v8, v6\nv_lshlrev_b32 v7, 7, v7")
    for ks in range(4):
        a(f"v_xor_b32 v9, {2*ks}, v8\nv_lshl_add_u32 v{96+ks}, v9, 4, v7\nv_add_u32 v{101+ks}, 81920, v{96+ks}")
    a("v_bfe_u32 v7, v1, 2, 2\nv_lshl_add_u32 v8, v6, 3, v7\nv_lshlrev_b32 v8, 7, v8")
    a("v_bfe_u32 v9, v1, 4, 1\nv_lshlrev_b32 v9, 5, v9\nv_and_b32 v10, 3, v1\nv_lshl_add_u32 v9, v10, 3, v9")
    a("s_mul_i32 s34, s41, 56\nv_add_u32 v9, s34, v9")
    a("v_lshrrev_b32 v7, 1, v7\nv_lshlrev_b32 v7, 6, v7\nv_xor_b32 v9, v9, v7")
    a("v_add_u32 v100, v8, v9\nv_add_u32 v100, 16384, v100\nv_add_u32 v105, 81920, v100")
    a(f"s_cmp_eq_u32 s28, 0\ns_cselect_b32 s34, 0, {f2u(1e-6)}")
    for r in range(16,48): a(f"v_mov_b32 v{r}, s34")
    for r in range(48,64): a(f"v_mov_b32 v{r}, 0")
    a("s_lshl_b32 s42, s30, 1\ns_add_u32 s42, s42, s41")
    a("s_lshl_b32 s43, s29, 2\ns_add_u32 s43, s43, s40")
    a("s_lshl_b32 s44, s42, 6\ns_add_u32 s44, s44, s43")
    a("v_lshlrev_b32 v11, 4, v1")
    def reads(st,ks,fs):
        b=st%4; xa=(96 if b<2 else 101)+ks; wa=100 if b<2 else 105; bo=(b&1)*40960
        X=64+16*fs; W=X+4
        a(f"ds_read_b128 {v(X,4)}, v{xa} offset:{bo}")
        for pt in range(3):
            for u in range(2):
                a(f"ds_read_b64_tr_b16 {v(W+4*pt+2*u,2)}, v{wa} offset:{bo+pt*8192+ks*2048+u*512}")
    def mainloop(p):
        vm=[15,10,10,10,10,5,0]
        a(f"s_waitcnt vmcnt({vm[0]})\ns_barrier")
        reads(0,0,0)
        fs=0
        for st in range(7):
            for ks in range(4):
                last=(st==6 and ks==3)
                if ks<3:
                    reads(st,ks+1,fs^1); a("s_waitcnt lgkmcnt(7)")
                elif not last:
                    a(f"s_waitcnt vmcnt({vm[st+1]}) lgkmcnt(0)\ns_barrier")
                    reads(st+1,0,fs^1)
                    if st+4<7: dma(st+4)
                else:
                    a("s_waitcnt lgkmcnt(0)")
                X=64+16*fs; W=X+4
                a(mfma(16,W,X))
                a(mfma(32,W+4,X) if p==0 else mfma(32,X,W+4))
                a(mfma(48,X,W+8))
                fs^=1
    a("s_cmp_eq_u32 s28, 0\ns_cbranch_scc0 K1_B")
    mainloop(0)
    a(f"s_mov_b32 s45, {f2u(CS)}\ns_lshl_b32 s46, s44, 11\ns_lshl_b32 s47, s44, 12\ns_add_u32 s47, s47, {KV}")
    a("s_nop 7")
    a("s_mov_b32 exec_lo, 0")
    for r in (28,29,30,31,44,45,46,47): a(f"v_mov_b32 v{r}, 0")
    a("s_mov_b32 exec_lo, -1")
    for r in range(16,32): a(f"v_mul_f32 v{r}, s45, v{r}")
    for j in range(8): a(f"v_cvt_pk_bf16_f32 v{64+j}, v{16+2*j}, v{17+2*j}")
    a(f"buffer_store_dwordx4 v[64:67], v11, s[24:27], s46 offen\nbuffer_store_dwordx4 v[68:71], v11, s[24:27], s46 offen offset:1024")
    for j in range(8): a(f"v_cvt_pk_bf16_f32 v{72+j}, v{32+2*j}, v{33+2*j}")
    a("s_mov_b32 exec_lo, 0\nv_mov_b32 v78, 0x3f803f80\nv_mov_b32 v79, 0x3f80\ns_mov_b32 exec_lo, -1")
    a(f"buffer_store_dwordx4 v[72:75], v11, s[24:27], s47 offen\nbuffer_store_dwordx4 v[76:79], v11, s[24:27], s47 offen offset:1024")
    for j in range(8): a(f"v_cvt_pk_bf16_f32 v{80+j}, v{48+2*j}, v{49+2*j}")
    a("s_mov_b32 exec_lo, 0x10000000\ns_mov_b32 exec_hi, 0x10000000")
    for j in range(8): a(f"v_mov_b32 v{80+j}, 0x3f803f80")
    a("s_mov_b64 exec, -1")
    a(f"buffer_store_dwordx4 v[80:83], v11, s[24:27], s47 offen offset:2048\nbuffer_store_dwordx4 v[84:87], v11, s[24:27], s47 offen offset:3072")
    a("v_mul_f32 v90, v16, v16\nv_mul_f32 v91, v32, v32")
    for r in range(1,16): a(f"v_fmac_f32 v90, v{16+r}, v{16+r}\nv_fmac_f32 v91, v{32+r}, v{32+r}")
    a("v_mov_b32 v92, v90\nv_mov_b32 v93, v91\ns_nop 1")
    a("v_permlane32_swap_b32 v90, v92\nv_permlane32_swap_b32 v91, v93")
    a("v_add_f32 v90, v90, v92\nv_add_f32 v91, v91, v93")
    for m in ("quad_perm:[1,0,3,2]","quad_perm:[2,3,0,1]","row_half_mirror","row_mirror"):
        a("s_nop 0")
        a(f"v_max_f32_dpp v90, v90, v90 {m} row_mask:0xf bank_mask:0xf\nv_max_f32_dpp v91, v91, v91 {m} row_mask:0xf bank_mask:0xf".replace("\n","\ns_nop 0\n") )
    a("s_nop 0\nv_readlane_b32 s48, v90, 0\nv_readlane_b32 s49, v90, 16\nv_readlane_b32 s50, v91, 0\nv_readlane_b32 s51, v91, 16\ns_nop 1")
    a("s_max_u32 s48, s48, s49\ns_max_u32 s50, s50, s51")
    a(f"s_lshl_b32 s49, s44, 2\ns_add_u32 s49, s49, {NRM}")
    a("v_mov_b32 v90, s48\nv_mov_b32 v91, s50\nv_mov_b32 v92, 0\ns_mov_b64 exec, 1")
    a("buffer_store_dword v90, v92, s[24:27], s49 offen\ns_add_u32 s49, s49, 4096\nbuffer_store_dword v91, v92, s[24:27], s49 offen")
    a("s_endpgm")
    a("K1_B:")
    mainloop(1)
    a(f"s_mov_b32 s45, {f2u(LOG2E)}\nv_mov_b32 v88, {f2u(-1e-6*LOG2E)}\nv_mov_b32 v89, {f2u(1e-6)}")
    a(f"s_lshl_b32 s46, s44, 11\ns_add_u32 s46, s46, {PQ}")
    a("s_nop 5")
    def phi(base,tmp,dst):
        for r in range(16): a(f"v_fma_f32 v{tmp+r}, v{base+r}, s45, v88")
        for r in range(16): a(f"v_exp_f32 v{tmp+r}, v{tmp+r} clamp\nv_max_f32 v{base+r}, v{base+r}, v89")
        for r in range(16): a(f"v_add_f32 v{base+r}, v{base+r}, v{tmp+r}")
        for j in range(8): a(f"v_cvt_pk_bf16_f32 v{dst+j}, v{base+2*j}, v{base+1+2*j}")
    phi(32,64,96)
    for j in range(8): a(f"v_cvt_pk_bf16_f32 v{104+j}, v{48+2*j}, v{49+2*j}")
    a("s_mov_b32 exec_lo, 0x10000000\ns_mov_b32 exec_hi, 0x10000000")
    for j in range(8): a(f"v_mov_b32 v{104+j}, 0x3f803f80")
    a("s_mov_b64 exec, -1\ns_nop 1")
    a(mfma(48,96,104,"0")); a(mfma(48,100,108))
    phi(16,64,80)
    a("s_mov_b32 exec_lo, 0\nv_mov_b32 v86, 0\nv_mov_b32 v87, 0\ns_mov_b32 exec_lo, -1")
    a(f"buffer_store_dwordx4 v[80:83], v11, s[24:27], s46 offen\nbuffer_store_dwordx4 v[84:87], v11, s[24:27], s46 offen offset:1024")
    a("s_lshl_b32 s34, s31, 12\ns_add_u32 s34, s34, 122880\nv_add_u32 v12, s34, v11")
    for q in range(4): a(f"ds_write_b128 v12, {v(48+4*q,4)} offset:{q*1024}")
    a("s_lshl_b32 s34, s41, 14\ns_lshl_b32 s35, s40, 10\ns_add_u32 s34, s34, s35\ns_add_u32 s34, s34, 122880\nv_add_u32 v12, s34, v11")
    a("s_waitcnt lgkmcnt(0)\ns_barrier")
    for t in range(4): a(f"ds_read_b128 {v(64+4*t,4)}, v12 offset:{t*4096}")
    a(f"s_lshl_b32 s34, s42, 4\ns_add_u32 s34, s34, s29\ns_lshl_b32 s34, s34, 12\ns_add_u32 s34, s34, s35\ns_add_u32 s34, s34, {KVP}")
    a("s_waitcnt lgkmcnt(0)")
    for r in range(4): a(f"v_add_f32 v{64+r}, v{64+r}, v{68+r}\nv_add_f32 v{72+r}, v{72+r}, v{76+r}")
    for r in range(4): a(f"v_add_f32 v{64+r}, v{64+r}, v{72+r}")
    a("buffer_store_dwordx4 v[64:67], v11, s[24:27], s34 offen")
    a("K1_END:\ns_endpgm")
    return a, kd(N,112), 163840

class VM:
    def __init__(self,a): self.a=a; self.q=[]; self.done=0
    def issue(self,tag,txt): self.a(txt); self.q.append(tag)
    def wait(self,tag):
        idx=max(i for i,t in enumerate(self.q) if t==tag)
        if idx<self.done: return
        n=len(self.q)-1-idx
        self.a(f"s_waitcnt vmcnt({n})"); self.done=idx+1
TH=30.0
def gen_k2(prio=True):
    a=Asm(); N="k2_kernel"; head(a,N)
    Q=[8,16]; O=[24,40]; S=[56,72]; P=[88,96]; R=104; BP=168; PQR=200
    a("s_cmp_ge_u32 s2, 256\ns_cbranch_scc1 K2_END")
    a("s_load_dwordx2 s[12:13], s[0:1], 64")
    a("v_lshrrev_b32 v2, 6, v0\nv_and_b32 v1, 63, v0")
    a("s_and_b32 s32, s2, 7\ns_lshr_b32 s33, s2, 3")
    a("v_readfirstlane_b32 s31, v2")
    a("s_and_b32 s28, s33, 1\ns_lshl_b32 s32, s32, 1\ns_add_u32 s28, s28, s32")
    a("s_lshr_b32 s29, s33, 1")
    a("v_lshlrev_b32 v2, 4, v1")
    a("s_and_b32 s40, s31, 3\ns_lshr_b32 s41, s31, 2")
    a("s_lshl_b32 s34, s28, 6\ns_lshl_b32 s35, s29, 2\ns_add_u32 s44, s34, s35")
    a("s_lshl_b32 s35, s41, 1\ns_add_u32 s35, s35, s44\ns_lshl_b32 s42, s35, 11")
    a(f"s_lshl_b32 s35, s40, 4\ns_add_u32 s35, s35, s34\ns_lshl_b32 s43, s35, 12\ns_add_u32 s43, s43, {KV}")
    a(f"s_lshl_b32 s45, s28, 8\ns_add_u32 s45, s45, {NRM+4096}\nv_lshlrev_b32 v3, 2, v1")
    a(f"s_lshl_b32 s46, s44, 2\ns_add_u32 s46, s46, {NRM}\nv_and_b32 v4, 12, v3")
    a("s_waitcnt lgkmcnt(0)")
    srd(a,24,12,WS_SIZE)
    vm=VM(a)
    vm.issue("n","buffer_load_dword v5, v3, s[24:27], s45 offen")
    vm.issue("n","buffer_load_dword v6, v4, s[24:27], s46 offen")
    for qb in range(2):
        for m in range(2):
            vm.issue("q",f"buffer_load_dwordx4 {v(Q[qb]+4*m,4)}, v2, s[24:27], s42 offen offset:{qb*2048+m*1024}")
    def ld(kind,kt):
        base=R+16*(kt%4)+(0 if kind=="K" else 8)
        a(f"s_add_u32 s47, s43, {kt*4096}")
        for m in range(2):
            vm.issue((kind,kt),f"buffer_load_dwordx4 {v(base+4*m,4)}, v2, s[24:27], s47 offen offset:{(0 if kind=='K' else 2048)+m*1024}")
    for kind,kt in (("K",0),("K",1),("V",0),("V",1),("K",2),("K",3)): ld(kind,kt)
    a(f"v_and_b32 v7, 255, v0\nv_lshlrev_b32 v7, 4, v7")
    a(f"s_lshl_b32 s48, s28, 16\ns_lshl_b32 s35, s41, 15\ns_add_u32 s48, s48, s35\ns_add_u32 s48, s48, {KVP}")
    for i in range(8):
        vm.issue("bp",f"buffer_load_dwordx4 {v(BP+4*i,4)}, v7, s[24:27], s48 offen")
        if i<7: a("s_add_u32 s48, s48, 4096")
    a(f"s_add_u32 s35, s44, s40\ns_lshl_b32 s48, s35, 11\ns_add_u32 s48, s48, {PQ}")
    for m in range(2): vm.issue("pq",f"buffer_load_dwordx4 {v(PQR+4*m,4)}, v2, s[24:27], s48 offen offset:{m*1024}")
    for r in range(O[0],O[0]+32): a(f"v_mov_b32 v{r}, 0")
    vm.wait("n")
    for m in ("quad_perm:[1,0,3,2]","quad_perm:[2,3,0,1]","row_half_mirror","row_mirror"):
        a(f"v_max_f32_dpp v5, v5, v5 {m} row_mask:0xf bank_mask:0xf\ns_nop 0")
        if "quad" in m: a(f"v_max_f32_dpp v6, v6, v6 {m} row_mask:0xf bank_mask:0xf")
        else: a("s_nop 0")
    a("v_readlane_b32 s48, v5, 0\nv_readlane_b32 s49, v5, 16\nv_readlane_b32 s50, v5, 32\nv_readlane_b32 s51, v5, 48\ns_nop 1")
    a("s_max_u32 s48, s48, s49\ns_max_u32 s50, s50, s51\ns_max_u32 s48, s48, s50")
    a("v_mul_f32 v6, s48, v6\ns_nop 0\nv_readfirstlane_b32 s48, v6\ns_nop 1")
    a(f"s_cmp_le_u32 s48, {f2u(TH*TH)}\ns_cbranch_scc0 K2_SLOW\nK2_MAIN:")
    def Kf(kt,m): return R+16*(kt%4)+4*m
    def Vf(kt,m): return R+16*(kt%4)+8+4*m
    NT=32
    def qk(i,m):
        kt,qb=divmod(i,2)
        if m==0 and qb==0: vm.wait(("K",kt))
        a(mfma(S[qb],Kf(kt,m),Q[qb]+4*m,"0" if m==0 else None))
    def pv(i,m):
        kt,qb=divmod(i,2)
        if m==0 and qb==0: vm.wait(("V",kt))
        a(mfma(O[qb],Vf(kt,m),P[qb]+4*m))
    def e(i,r): qb=i%2; return f"v_exp_f32 v{S[qb]+r}, v{S[qb]+r}"
    def c(i,j): qb=i%2; return f"v_cvt_pk_bf16_f32 v{P[qb]+j}, v{S[qb]+2*j}, v{S[qb]+2*j+1}"
    vm.wait("q")
    if prio: a("s_setprio 3")
    qk(0,0); qk(0,1)
    a("s_nop 11")
    for i in range(NT):
        seq=[e(i,0),e(i,1),e(i,2),c(i,0),e(i,3),e(i,4),c(i,1),e(i,5),e(i,6),c(i,2),e(i,7),e(i,8),c(i,3),e(i,9),e(i,10),c(i,4),e(i,11),e(i,12),c(i,5),e(i,13),e(i,14),c(i,6),e(i,15)]
        if prio and i in (16,26,30): a(f"s_setprio {2 if i==16 else 1 if i==26 else 0}")
        a(seq[0])
        if i>0: a(c(i-1,7))
        if i+1<NT: qk(i+1,0)
        for x in seq[1:5]: a(x)
        if i+1<NT: qk(i+1,1)
        for x in seq[5:11]: a(x)
        if i>0: pv(i-1,0)
        j=i//2
        if i%2==0:
            if j+2<16: ld("V",j+2)
        else:
            if j+4<16: ld("K",j+4)
        for x in seq[11:17]: a(x)
        if i>0: pv(i-1,1)
        for x in seq[17:23]: a(x)
    a("s_nop 0"); a(c(NT-1,7)); a("s_nop 1")
    pv(NT-1,0); pv(NT-1,1)
    vm.wait("pq")
    for st in (4,2,1):
        for i in range(st):
            for r in range(4): a(f"v_add_f32 v{BP+4*i+r}, v{BP+4*i+r}, v{BP+4*(i+st)+r}")
    a("v_lshlrev_b32 v3, 4, v0\nv_add_u32 v3, 65536, v3")
    a(f"ds_write_b128 v3, {v(BP,4)}")
    a("s_lshl_b32 s34, s31, 13\nv_add_u32 v3, s34, v2")
    for q in range(8): a(f"ds_write_b128 v3, {v(O[0]+4*q,4)} offset:{q*1024}")
    a("s_lshl_b32 s34, s41, 15\ns_lshl_b32 s35, s40, 11\ns_add_u32 s35, s35, s34\nv_add_u32 v3, s35, v2")
    a("s_lshr_b32 s35, s40, 1\ns_lshl_b32 s35, s35, 12\ns_add_u32 s35, s35, s34\ns_add_u32 s35, s35, 3584")
    a("v_and_b32 v4, 31, v1\nv_lshlrev_b32 v4, 4, v4\nv_add_u32 v4, s35, v4")
    a("v_add_u32 v5, 65536, v2")
    a("s_lshl_b32 s34, s29, 2\ns_lshl_b32 s35, s41, 1\ns_add_u32 s34, s34, s35\ns_lshr_b32 s35, s40, 1\ns_add_u32 s34, s34, s35")
    a(f"s_lshl_b32 s34, s34, 5\ns_lshl_b32 s35, s28, 1\ns_add_u32 s34, s34, s35\ns_and_b32 s35, s40, 1\ns_add_u32 s34, s34, s35\ns_lshl_b32 s34, s34, 10\ns_add_u32 s46, s34, {OF}")
    a("s_cmp_eq_u32 s35, 1\ns_cselect_b32 s49, -1, 0\ns_mov_b32 s48, 0")
    a("s_waitcnt lgkmcnt(0)\ns_barrier")
    for k in range(4):
        a(f"ds_read_b32 v{56+k}, v4 offset:{k*8192}")
    for k in range(4):
        a(f"ds_read_b128 {v(60+8*k,4)}, v3 offset:{k*8192}\nds_read_b128 {v(64+8*k,4)}, v3 offset:{k*8192+1024}")
    a("s_cmp_eq_u32 s41, 0\ns_cbranch_scc0 K2_NOB")
    for q in range(4):
        a(f"ds_read_b128 {v(104+4*q,4)}, v5 offset:{q*1024}\nds_read_b128 {v(120+4*q,4)}, v5 offset:{4096+q*1024}")
    a("s_waitcnt lgkmcnt(0)")
    for r in range(16): a(f"v_add_f32 v{104+r}, v{104+r}, v{120+r}")
    for j in range(8): a(f"v_cvt_pk_bf16_f32 v{136+j}, v{104+2*j}, v{105+2*j}")
    a("s_nop 1")
    a(mfma(144,136,PQR,"0")); a(mfma(144,140,PQR+4))
    a(f"s_lshl_b32 s34, s29, 2\ns_add_u32 s34, s34, s40\ns_lshl_b32 s34, s34, 5\ns_lshl_b32 s35, s28, 1\ns_add_u32 s34, s34, s35\ns_lshl_b32 s34, s34, 10\ns_add_u32 s47, s34, {OF+2*MB}")
    a("s_nop 4")
    a(f"v_add_f32 v6, {f2u(1e-6)}, v156\nv_add_f32 v7, {f2u(1e-6)}, v156\ns_nop 1\nv_permlane32_swap_b32 v6, v7\nv_rcp_f32 v7, v7\ns_nop 0")
    for r in range(16): a(f"v_mul_f32 v{144+r}, v{144+r}, v7")
    for j in range(8): a(f"v_cvt_pk_bf16_f32 v{136+j}, v{144+2*j}, v{145+2*j}")
    a("s_mov_b32 exec_lo, 0\nv_mov_b32 v142, 0\nv_mov_b32 v143, 0\ns_mov_b32 exec_lo, -1")
    a("buffer_store_dwordx4 v[136:139], v2, s[24:27], s47 offen\nbuffer_store_dwordx4 v[140:143], v2, s[24:27], s47 offen offset:1024")
    a("K2_NOB:")
    a("s_waitcnt lgkmcnt(0)")
    a("v_add_f32 v56, v56, v57\nv_add_f32 v58, v58, v59\nv_add_f32 v56, v56, v58\nv_rcp_f32 v56, v56")
    for r in range(8): a(f"v_add_f32 v{60+r}, v{60+r}, v{68+r}\nv_add_f32 v{76+r}, v{76+r}, v{84+r}")
    for r in range(8): a(f"v_add_f32 v{60+r}, v{60+r}, v{76+r}")
    for r in range(8): a(f"v_mul_f32 v{60+r}, v{60+r}, v56")
    for j in range(4): a(f"v_cvt_pk_bf16_f32 v{68+j}, v{60+2*j}, v{61+2*j}")
    a("v_cndmask_b32 v70, v70, 0, s[48:49]\nv_cndmask_b32 v71, v71, 0, s[48:49]")
    a("buffer_store_dwordx4 v[68:71], v2, s[24:27], s46 offen")
    a("K2_END:\ns_endpgm")
    a("K2_SLOW:")
    a("s_waitcnt vmcnt(0)\nv_mov_b32 v208, 0xff800000\nv_mov_b32 v209, 0xff800000\ns_mov_b32 s50, s43\ns_mov_b32 s51, 16")
    a("K2_SL:")
    a("buffer_load_dwordx4 v[212:215], v2, s[24:27], s50 offen\nbuffer_load_dwordx4 v[216:219], v2, s[24:27], s50 offen offset:1024\ns_waitcnt vmcnt(0)")
    for qb in range(2):
        a(mfma(S[qb],212,Q[qb],"0")); a(mfma(S[qb],216,Q[qb]+4))
    a("s_nop 11")
    for qb in range(2):
        for r in range(0,16,2): a(f"v_max3_f32 v{208+qb}, v{208+qb}, v{S[qb]+r}, v{S[qb]+r+1}")
    a("s_add_u32 s50, s50, 4096\ns_sub_u32 s51, s51, 1\ns_cmp_lg_u32 s51, 0\ns_cbranch_scc1 K2_SL")
    a("v_mov_b32 v210, v208\nv_mov_b32 v211, v209\ns_nop 1\nv_permlane32_swap_b32 v208, v210\nv_permlane32_swap_b32 v209, v211")
    a("v_max_f32 v208, v208, v210\nv_max_f32 v209, v209, v211")
    a("v_lshlrev_b32 v3, 2, v1\ns_lshl_b32 s34, s31, 9\ns_add_u32 s34, s34, 73728\nv_add_u32 v4, s34, v3")
    a("ds_write_b32 v4, v208\nds_write_b32 v4, v209 offset:256")
    a("s_lshl_b32 s34, s41, 11\ns_add_u32 s34, s34, 73728\nv_add_u32 v4, s34, v3\ns_waitcnt lgkmcnt(0)\ns_barrier")
    for k in range(4): a(f"ds_read_b32 v{212+k}, v4 offset:{k*512}\nds_read_b32 v{216+k}, v4 offset:{k*512+256}")
    a("s_waitcnt lgkmcnt(0)")
    for qb in range(2):
        b=212+4*qb
        a(f"v_max3_f32 v{b}, v{b}, v{b+1}, v{b+2}\nv_max_f32 v{b}, v{b}, v{b+3}\nv_sub_f32 v{b}, 0, v{b}")
        a(f"v_and_b32 v{b+1}, 0xffff0000, v{b}\nv_sub_f32 v{b}, v{b}, v{b+1}\nv_and_b32 v{b+2}, 0xffff0000, v{b}\nv_sub_f32 v{b}, v{b}, v{b+2}")
        a(f"v_lshrrev_b32 v{b+1}, 16, v{b+1}\nv_or_b32 v{b+1}, v{b+1}, v{b+2}\nv_lshrrev_b32 v{b}, 16, v{b}")
        a(f"s_mov_b32 exec_lo, 0\nv_mov_b32 v{Q[qb]+6}, v{b+1}\nv_mov_b32 v{Q[qb]+7}, v{b}\ns_mov_b32 exec_lo, -1")
    a("s_nop 1\ns_branch K2_MAIN")
    return a, kd(N,224), 77824

def gen_k3():
    a=Asm(); N="k3_kernel"; head(a,N)
    a("s_cmp_ge_u32 s2, 224\ns_cbranch_scc1 K3_END")
    a("s_load_dwordx2 s[4:5], s[0:1], 16\ns_load_dwordx2 s[6:7], s[0:1], 40\ns_load_dwordx2 s[8:9], s[0:1], 48\ns_load_dwordx2 s[12:13], s[0:1], 64")
    a("v_lshrrev_b32 v2, 6, v0\nv_and_b32 v1, 63, v0")
    a("s_and_b32 s32, s2, 7\ns_lshr_b32 s33, s2, 3")
    a("v_readfirstlane_b32 s31, v2")
    a("s_mul_i32 s34, s33, 37\ns_lshr_b32 s34, s34, 8")
    a("s_mul_i32 s35, s34, 7\ns_sub_u32 s30, s33, s35")
    a("s_lshl_b32 s32, s32, 2\ns_add_u32 s32, s32, s34")
    a("s_and_b32 s28, s32, 1\ns_lshr_b32 s29, s32, 1")
    a("s_and_b32 s40, s31, 3\ns_lshr_b32 s41, s31, 2")
    a("v_lshrrev_b32 v5, 3, v1\nv_and_b32 v6, 7, v1\ns_lshl_b32 s34, s31, 3\nv_add_u32 v7, s34, v5\nv_mul_u32_u24 v7, 896, v7")
    a("v_bfe_u32 v8, v5, 1, 1\nv_lshlrev_b32 v8, 2, v8\nv_xor_b32 v9, v6, v8\nv_lshl_add_u32 v4, v9, 4, v7")
    a("s_lshl_b32 s34, s30, 7\nv_add_u32 v4, s34, v4\ns_lshl_b32 s36, s31, 10")
    a("v_lshlrev_b32 v2, 4, v1")
    a(f"s_lshl_b32 s34, s29, 2\ns_add_u32 s42, s34, s40\ns_lshl_b32 s34, s42, 15\ns_lshl_b32 s35, s41, 14\ns_add_u32 s34, s34, s35\ns_lshl_b32 s35, s28, 21\ns_add_u32 s34, s34, s35\ns_add_u32 s43, s34, {OF}")
    a("s_waitcnt lgkmcnt(0)")
    a("s_cmp_eq_u32 s28, 0\ns_cselect_b32 s4, s4, s6\ns_cselect_b32 s5, s5, s7")
    srd(a,16,4,448*448*2); srd(a,20,8,2048*896*2); srd(a,24,12,WS_SIZE)
    vm=VM(a)
    for j in range(7):
        a(f"s_add_u32 m0, s36, {j*8192}\ns_mov_b32 s39, {j*64*896}")
        vm.issue("w","buffer_load_dwordx4 v4, s[16:19], s39 offen lds")
    a(f"s_mov_b32 m0, {448*128}\ns_mov_b32 s39, {448*896}")
    vm.issue("w","buffer_load_dwordx4 v4, s[16:19], s39 offen lds")
    for f in range(16):
        if f%4==0 and f: a("s_add_u32 s43, s43, 4096")
        vm.issue(("o",f),f"buffer_load_dwordx4 {v(32+4*f,4)}, v2, s[24:27], s43 offen offset:{(f%4)*1024}")
    a("v_lshrrev_b32 v6, 5, v1\nv_bfe_u32 v7, v1, 2, 2\nv_lshl_add_u32 v8, v6, 2, v7\ns_mul_i32 s34, s41, 224\nv_add_u32 v8, s34, v8\nv_lshlrev_b32 v8, 7, v8")
    a("v_bfe_u32 v9, v1, 4, 1\nv_lshlrev_b32 v9, 5, v9\nv_and_b32 v10, 3, v1\nv_lshl_add_u32 v9, v10, 3, v9")
    a("v_lshrrev_b32 v7, 1, v7\nv_lshlrev_b32 v7, 6, v7\nv_xor_b32 v9, v9, v7\ns_lshl_b32 s34, s41, 6\nv_xor_b32 v9, s34, v9")
    a("v_add_u32 v24, v8, v9\nv_xor_b32 v25, 64, v24")
    a("v_and_b32 v5, 31, v1\ns_lshl_b32 s34, s42, 5\nv_add_u32 v5, s34, v5\nv_mul_u32_u24 v5, 1792, v5\nv_lshl_add_u32 v26, v6, 4, v5")
    a("s_mul_i32 s44, s28, 896\ns_lshl_b32 s34, s30, 7\ns_add_u32 s44, s44, s34\ns_lshl_b32 s34, s41, 6\ns_add_u32 s44, s44, s34")
    a("s_lshl_b32 s34, s31, 12\ns_add_u32 s34, s34, 58368\nv_add_u32 v27, s34, v2")
    a("s_xor_b32 s34, s31, 4\ns_lshl_b32 s34, s34, 12\ns_add_u32 s34, s34, 58368\nv_add_u32 v28, s34, v2")
    vm.wait("w"); a("s_barrier")
    def rd(f,fs):
        hl,m=divmod(f,2); off=(hl*28+16*m)*128
        for t,ad in enumerate((24,25)):
            for u in range(2): a(f"ds_read_b64_tr_b16 {v(8+8*fs+4*t+2*u,2)}, v{ad} offset:{off+u*1024}")
    rd(0,0)
    for f in range(16):
        fs=f&1
        if f<15: rd(f+1,fs^1); a("s_waitcnt lgkmcnt(4)")
        else: a("s_waitcnt lgkmcnt(0)")
        vm.wait(("o",f))
        a(mfma(96,8+8*fs,32+4*f,"0" if f==0 else None)); a(mfma(112,12+8*fs,32+4*f,"0" if f==0 else None))
    a("s_nop 11")
    for q in range(4): a(f"ds_write_b128 v27, {v(112+4*q,4)} offset:{q*1024}")
    a("s_waitcnt lgkmcnt(0)\ns_barrier")
    for q in range(4): a(f"ds_read_b128 {v(32+4*q,4)}, v28 offset:{q*1024}")
    a("s_waitcnt lgkmcnt(0)")
    for r in range(16): a(f"v_add_f32 v{96+r}, v{96+r}, v{32+r}")
    for j in range(8): a(f"v_cvt_pk_bf16_f32 v{48+j}, v{96+2*j}, v{97+2*j}")
    a("s_nop 1\nv_permlane32_swap_b32 v48, v50\nv_permlane32_swap_b32 v49, v51\nv_permlane32_swap_b32 v52, v54\nv_permlane32_swap_b32 v53, v55")
    a("buffer_store_dwordx4 v[48:51], v26, s[20:23], s44 offen\nbuffer_store_dwordx4 v[52:55], v26, s[20:23], s44 offen offset:32")
    a("K3_END:\ns_endpgm")
    return a, kd(N,128), 58368+32768

def emit(path, ks, grids):
    hdr="; generated by work/gen/gen1.py (hand-written generator)\n"
    body='.amdgcn_target "amdgcn-amd-amdhsa--gfx950"\n.text\n'
    kds='.section .rodata,"a"\n'
    for (name,(a,k,lds)),g in zip(ks,grids):
        hdr+=f"; @launch kernel={name} grid=({g},1,1) block=(512,1,1) lds={lds}\n"
        errs=check(a.lines,name)
        for e_ in errs: print("HAZARD",e_)
        body+=a.text(); kds+=".p2align 6\n"+k
    open(path,"w").write(hdr+body+kds)
if __name__=="__main__":
    out=sys.argv[1] if len(sys.argv)>1 else "concat_heads__softmax_full_mha__linear_attn_block__prompt.s"
    emit(out,[("k1_kernel",gen_k1()),("k2_kernel",gen_k2()),("k3_kernel",gen_k3())],[256,256,224])
```

```python
from gen1 import *
def gen_empty():
    a=Asm(); head(a,"e_kernel"); a("s_endpgm"); return a, kd("e_kernel",8), 0
def emit2(path, ks, launches):
    hdr="; gen\n"
    for name,g,lds in launches: hdr+=f"; @launch kernel={name} grid=({g},1,1) block=(512,1,1) lds={lds}\n"
    body='.amdgcn_target "amdgcn-amd-amdhsa--gfx950"\n.text\n'; kds='.section .rodata,"a"\n'
    for name,(a,k,lds) in ks:
        body+=a.text(); kds+=".p2align 6\n"+k
    open(path,"w").write(hdr+body+kds)
k1=gen_k1();k2=gen_k2();k3=gen_k3();e=gen_empty()
ks=[("k1_kernel",k1),("k2_kernel",k2),("k3_kernel",k3),("e_kernel",e)]
base=[("k1_kernel",256,k1[2]),("k2_kernel",256,k2[2]),("k3_kernel",224,k3[2])]
emit2("va1.s",ks,base+[("e_kernel",256,0)])
emit2("va2.s",ks,base+[("e_kernel",256,0)]*3)
emit2("va3.s",ks,[base[0],base[0],base[1],base[2]])
emit2("va4.s",ks,[base[0],base[1],base[1],base[2]])
emit2("va5.s",ks,[base[0],base[1],base[2],base[2]])
```

```python
import struct, sys
from asmlib import *
def f2u(x): return struct.unpack("<I",struct.pack("<f",x))[0]
MB=1<<20
TBS=28672
QG=0; KG=2*MB; VF=4*MB; PQG=6*MB; PKT=8*MB; VT=10*MB; OF=12*MB
TBV=4*456*16
KVS=16*MB
CNT=KVS+65536
NRM=16*MB+131072
FL=17*MB
F1=FL; F0=FL+256*128; F2=FL+512*128
WS_SIZE=18*MB
EX=114688
TAG=0x00800000
CFG=dict(t1=5,t2=21,wo0=2,f2=2,prio=(16,26,30),stop=None)
LOG2E=1.4426950408889634
CS=28**-0.5*LOG2E
TH=60.0
SPIN=200000
MF="v_mfma_f32_32x32x16_bf16"
INSTR=False
STAMP=32*MB
def mfma(d,a,b,c=None):
    return f"{MF} {v(d,16)}, {v(a,4)}, {v(b,4)}, {v(d,16) if c is None else c}"
def srd(a,d,base,size):
    a(f"s_mov_b32 s{d}, s{base}\ns_and_b32 s{d+1}, s{base+1}, 0xffff\ns_mov_b32 s{d+2}, {size}\ns_mov_b32 s{d+3}, 0x20000")
class VM:
    def __init__(self,a): self.a=a; self.q=[]; self.done=0
    def issue(self,tag,txt,sp=False): self.a(txt); self.q.append((tag,sp))
    def wait(self,tag,extra=""):
        idx=max(i for i,t in enumerate(self.q) if t[0]==tag)
        sp=self.q[idx][1]
        ns=min(63,len(self.q)-1-idx); nb=min(63,sum(1 for t in self.q[idx+1:] if not t[1]))
        if sp:
            self.a(f"s_waitcnt vmcnt({ns}) {extra}"); return
        if idx<self.done:
            if extra: self.a(f"s_waitcnt {extra}")
            return
        self.done=idx+1
        if ns==nb: self.a(f"s_waitcnt vmcnt({nb}) {extra}")
        else:
            L=lab("W"); self.a(f"s_waitcnt vmcnt({ns}) {extra}\ns_cbranch_vccnz {L}\ns_waitcnt vmcnt({nb})\n{L}:")
    def drop_sp(self):
        nd=sum(1 for t in self.q[:self.done] if not t[1])
        self.q=[t for t in self.q if not t[1]]; self.done=nd
NSTAMP=12
def stamp(a,i,real=False):
    if not INSTR: return
    a(f"s_memtime s[{72+2*i}:{73+2*i}]")
    if real: a(f"s_memrealtime s[{98+2*(0 if i==0 else 1)}:{99+2*(0 if i==0 else 1)}]")
    a("s_waitcnt lgkmcnt(0)")
def stamp_out(a,n):
    if not INSTR: return
    a("s_waitcnt vmcnt(0)")
    stamp(a,n,True)
    a("s_mov_b64 exec, 1")
    a(f"s_lshl_b32 s62, s2, 3\ns_add_u32 s62, s62, s31\ns_lshl_b32 s62, s62, 7\ns_add_u32 s62, s62, {STAMP}\ns_mov_b32 s26, {64*MB}\nv_mov_b32 v0, 0")
    for i in range(n+1):
        a(f"v_mov_b32 v1, s{72+2*i}\nbuffer_store_dword v1, v0, s[24:27], s62 offen offset:{4*i}")
    a("v_mov_b32 v1, s98\nbuffer_store_dword v1, v0, s[24:27], s62 offen offset:64\nv_mov_b32 v1, s100\nbuffer_store_dword v1, v0, s[24:27], s62 offen offset:68")
uid=[0]
def lab(p):
    uid[0]+=1; return f"L{p}{uid[0]}"
def spin(a, cmp, loads):
    L=lab("P"); D=lab("D")
    a(f"s_mov_b32 s52, {SPIN}\n{L}:\n{cmp}\ns_cmp_eq_u64 s[48:49], 0\ns_cbranch_scc1 {D}\ns_sub_u32 s52, s52, 1\ns_cbranch_scc1 {D}")
    a(f"{loads}\ns_waitcnt vmcnt(0)\ns_branch {L}\n{D}:")
def flag_store(a, soff, vm=None, t=14):
    a(f"v_mov_b32 v{t}, s50\nv_mov_b32 v{t+1}, s51\ns_mov_b64 exec, 1")
    x=f"buffer_store_dwordx2 v[{t}:{t+1}], v9, s[24:27], s{soff} offen sc1"
    if vm: vm.issue("flag",x)
    else: a(x)
    a("s_mov_b64 exec, -1")

def gen(prio=True):
    a=Asm(); N="concat_heads__softmax_full_mha__linear_attn_block__prompt_kernel"
    a(f".globl {N}\n.p2align 8\n.type {N},@function\n{N}:")
    a("s_cmp_ge_u32 s2, 256\ns_cbranch_scc1 L_END")
    a("s_load_dwordx8 s[4:11], s[0:1], 0\ns_load_dwordx4 s[12:15], s[0:1], 32\ns_load_dwordx4 s[64:67], s[0:1], 48\ns_load_dwordx2 s[68:69], s[0:1], 64\ns_memrealtime s[50:51]")
    stamp(a,0,True)
    a("v_lshrrev_b32 v2, 6, v0\nv_and_b32 v1, 63, v0\ns_and_b32 s32, s2, 7\ns_lshr_b32 s30, s2, 3")
    a("v_readfirstlane_b32 s31, v2")
    a("s_mul_i32 s34, s30, 37\ns_lshr_b32 s34, s34, 8")
    a("s_mul_i32 s35, s34, 7\ns_sub_u32 s54, s30, s35")
    a("s_lshl_b32 s33, s32, 2\ns_add_u32 s53, s33, s34")
    a("s_lshl_b32 s35, s34, 1\ns_add_u32 s35, s35, s54\ns_cmp_ge_u32 s35, 7\ns_cselect_b32 s36, 7, 0\ns_sub_u32 s35, s35, s36\ns_cmp_ge_u32 s35, 7\ns_cselect_b32 s36, 7, 0\ns_sub_u32 s40, s35, s36")
    a("s_and_b32 s55, s30, 1\ns_lshl_b32 s33, s32, 1\ns_add_u32 s55, s55, s33\ns_lshr_b32 s56, s30, 1")
    a("s_and_b32 s57, s31, 1\ns_bfe_u32 s58, s31, 0x10001\ns_lshr_b32 s59, s31, 2\ns_and_b32 s60, s31, 3\ns_lshr_b32 s61, s31, 2")
    a("v_lshlrev_b32 v8, 4, v1\nv_mov_b32 v9, 0")
    a("v_lshrrev_b32 v5, 3, v1\nv_and_b32 v6, 7, v1\ns_lshl_b32 s35, s31, 3\nv_add_u32 v7, s35, v5")
    a("s_lshl_b32 s34, s53, 6\nv_add_u32 v10, s34, v7\nv_mul_u32_u24 v10, 896, v10")
    a("v_bfe_u32 v11, v7, 1, 3\nv_xor_b32 v11, v6, v11\nv_lshl_add_u32 v2, v11, 4, v10")
    a("v_mul_u32_u24 v10, 2688, v7\nv_bfe_u32 v11, v7, 1, 1\nv_lshlrev_b32 v11, 2, v11\nv_xor_b32 v11, v6, v11\nv_lshl_add_u32 v3, v11, 4, v10")
    a("s_lshl_b32 s34, s54, 7\nv_add_u32 v3, s34, v3\ns_lshl_b32 s36, s31, 10")
    a("v_mul_u32_u24 v10, 896, v7\nv_lshl_add_u32 v4, v11, 4, v10\nv_add_u32 v4, s34, v4\nv_lshlrev_b32 v13, 2, v1")
    a("s_mul_i32 s33, s55, 7\ns_lshr_b32 s29, s33, 1\ns_lshl_b32 s29, s29, 9")
    a(f"s_mul_i32 s70, s60, {16*TBS}\ns_add_u32 s70, s70, s29\ns_add_u32 s70, s70, {KG}")
    a(f"s_lshl_b32 s71, s55, 2\ns_add_u32 s71, s71, s60\ns_lshl_b32 s71, s71, 15\ns_add_u32 s71, s71, {VF}")
    a(f"s_lshl_b32 s28, s54, 5\ns_add_u32 s28, s28, s53\ns_lshl_b32 s28, s28, 3\ns_add_u32 s28, s28, s31\ns_lshl_b32 s28, s28, 7\ns_add_u32 s28, s28, {F2}")
    a(f"s_cmp_ge_u32 s30, 28\ns_cselect_b32 s28, {WS_SIZE}, s28")
    a(f"s_lshr_b32 s34, s33, 4\ns_add_u32 s35, s33, 6\ns_lshr_b32 s35, s35, 4\ns_sub_u32 s35, s35, s34\ns_lshl_b32 s34, s34, 12\ns_add_u32 s34, s34, {F1}\ns_lshl_b32 s35, s35, 12")
    a(f"v_and_b32 v10, 31, v1\nv_lshlrev_b32 v10, 7, v10\nv_add_u32 v159, {F0}, v10\nv_lshrrev_b32 v11, 5, v1\nv_mul_u32_u24 v11, s35, v11\nv_add3_u32 v158, v10, v11, s34")
    a("s_waitcnt lgkmcnt(0)")
    srd(a,16,4,2048*448*2); srd(a,20,6,448*1344*2); srd(a,24,68,WS_SIZE); srd(a,44,66,256)
    a("s_or_b32 s50, s50, 1\ns_lshl_b32 s34, s2, 3\ns_add_u32 s34, s34, s31\ns_cmp_lg_u32 s34, 2040\ns_cbranch_scc1 L_NN")
    a("v_mov_b32 v6, s50\nv_mov_b32 v7, s51\ns_mov_b64 exec, 1\nbuffer_store_dwordx2 v[6:7], v9, s[44:47], 0 offen sc1\ns_mov_b64 exec, -1\nL_NN:")
    a("s_cmp_ge_u32 s30, 28\ns_cbranch_scc1 L_IDLE")
    vm=VM(a)
    def buf(st): return ((st+1)%4)*32768
    def dma(st):
        if st==7:
            srd(a,16,10,2048*448*2); srd(a,20,12,448*1344*2)
        b=buf(st)
        a(f"s_lshl_b32 s38, s40, 7\ns_add_u32 m0, s36, {b}\ns_mul_i32 s39, s40, 172032")
        vm.issue(("d",st),"buffer_load_dwordx4 v2, s[16:19], s38 offen lds")
        for pt in range(3):
            a(f"s_add_u32 m0, s36, {b+8192+pt*8192}")
            a("s_add_u32 s39, s39, 896" if pt else "s_add_u32 s40, s40, 1")
            vm.issue(("d",st),"buffer_load_dwordx4 v3, s[20:23], s39 offen lds")
        a("s_cmp_eq_u32 s40, 7\ns_cselect_b32 s40, 0, s40")
    dma(0); a("s_barrier"); dma(1); a("s_barrier"); dma(2); a("s_barrier"); dma(3)
    a("v_and_b32 v5, 31, v1\nv_lshrrev_b32 v6, 5, v1\ns_lshl_b32 s34, s57, 5\nv_add_u32 v7, s34, v5")
    a("v_bfe_u32 v10, v7, 1, 3\nv_xor_b32 v10, v10, v6\ns_lshl_b32 s34, s59, 2\nv_xor_b32 v10, s34, v10\nv_lshlrev_b32 v7, 7, v7")
    a("v_lshl_add_u32 v144, v10, 4, v7\nv_xor_b32 v10, 2, v10\nv_lshl_add_u32 v145, v10, 4, v7\nv_add_u32 v146, 65536, v144\nv_add_u32 v147, 65536, v145")
    a("v_bfe_u32 v7, v1, 2, 2\nv_lshl_add_u32 v10, v6, 3, v7\nv_lshlrev_b32 v10, 7, v10")
    a("v_bfe_u32 v11, v1, 4, 1\nv_lshlrev_b32 v11, 5, v11\nv_and_b32 v12, 3, v1\nv_lshl_add_u32 v11, v12, 3, v11")
    a("s_lshl_b32 s34, s58, 6\nv_add_u32 v11, s34, v11\nv_lshrrev_b32 v7, 1, v7\nv_lshlrev_b32 v7, 6, v7\nv_xor_b32 v11, v11, v7")
    a("s_lshl_b32 s34, s59, 12\ns_add_u32 s34, s34, 8192\nv_add3_u32 v148, v10, v11, s34\nv_add_u32 v149, 65536, v148")
    a(f"s_cmp_eq_u32 s59, 0\ns_cselect_b32 s34, {f2u(1e-6)}, 0")
    for r in range(64,96): a(f"v_mov_b32 v{r}, s34")
    a(f"s_mul_i32 s34, s31, 6144\ns_add_u32 s34, s34, {EX}\nv_add_u32 v150, s34, v8")
    a(f"s_xor_b32 s34, s31, 4\ns_mul_i32 s34, s34, 6144\ns_add_u32 s34, s34, {EX}\nv_add_u32 v151, s34, v8")
    a(f"s_lshl_b32 s41, s53, 1\ns_add_u32 s41, s41, s57\ns_lshl_b32 s42, s54, 1\ns_add_u32 s42, s42, s58\ns_mul_i32 s43, s41, {TBS}")
    a("s_lshl_b32 s34, s42, 5\nv_add_u32 v152, s34, v5\nv_mul_u32_u24 v10, 2341, v152\nv_lshrrev_b32 v10, 16, v10")
    a("v_mul_u32_u24 v11, 28, v10\nv_sub_u32 v11, v152, v11\nv_lshlrev_b32 v10, 17, v10")
    a("v_add_u32 v12, 21, v11\nv_add_u32 v15, 18, v11\nv_add_u32 v14, 7, v11\nv_lshrrev_b32 v12, 5, v12\nv_lshrrev_b32 v15, 5, v15\nv_lshrrev_b32 v14, 5, v14")
    a("v_add3_u32 v11, v11, v12, v15\nv_add_u32 v11, v11, v14\nv_lshl_add_u32 v10, v11, 4, v10\nv_lshl_add_u32 v153, v6, 9, v10")
    a("v_mul_u32_u24 v10, 7168, v6\nv_lshl_add_u32 v154, v152, 4, v10\nv_lshl_add_u32 v155, v6, 7, v154")
    vm.issue("nonce","buffer_load_dwordx2 v[156:157], v9, s[44:47], 0 offen sc1")
    FR=[112,128]
    def reads(st,i):
        b=buf(st); hi=b>=65536; bo=b&65535
        X=FR[i]; W=X+4
        a(f"ds_read_b128 {v(X,4)}, v{144+i+(2 if hi else 0)} offset:{bo}")
        for pt in range(3):
            for u in range(2):
                a(f"ds_read_b64_tr_b16 {v(W+4*pt+2*u,2)}, v{149 if hi else 148} offset:{bo+pt*8192+i*2048+u*512}")
    def mm(st,i):
        p=st//7; A=16 if p==0 else 64
        X=FR[i]; W=X+4
        z=(st==0 and i==0); zb=(st==7 and i==0)
        a(mfma(A,W,X,"0" if z else None))
        a(mfma(A+16,W+4,X,"0" if z else None) if p==0 else mfma(A+16,X,W+4))
        a(mfma(A+32,X,W+8,"0" if (z or zb) else None))
    def exch_write(A):
        L=lab("X"); E=lab("X")
        a(f"s_cmp_eq_u32 s59, 0\ns_cbranch_scc0 {L}")
        for q in range(4): a(f"ds_write_b128 v150, {v(A+16+4*q,4)} offset:{q*1024}")
        for q in range(2): a(f"ds_write_b128 v150, {v(A+40+4*q,4)} offset:{4096+q*1024}")
        a(f"s_branch {E}\n{L}:")
        for q in range(4): a(f"ds_write_b128 v150, {v(A+4*q,4)} offset:{q*1024}")
        for q in range(2): a(f"ds_write_b128 v150, {v(A+32+4*q,4)} offset:{4096+q*1024}")
        for r in range(16): a(f"v_mov_b32 v{A+r}, v{A+16+r}")
        for r in range(8): a(f"v_mov_b32 v{A+32+r}, v{A+40+r}")
        a(f"{E}:")
    def exch_read(T):
        for q in range(6): a(f"ds_read_b128 {v(T+4*q,4)}, v151 offset:{q*1024}")
    def exch_add(A,T):
        for r in range(16): a(f"v_add_f32 v{A+r}, v{A+r}, v{T+r}")
        for r in range(8): a(f"v_add_f32 v{A+32+r}, v{A+32+r}, v{T+16+r}")
    def swaps(P):
        a(f"s_nop 1\nv_permlane32_swap_b32 v{P}, v{P+2}\nv_permlane32_swap_b32 v{P+1}, v{P+3}\nv_permlane32_swap_b32 v{P+4}, v{P+6}\nv_permlane32_swap_b32 v{P+5}, v{P+7}")
    def epiA():
        A=16; T=160
        a("s_waitcnt lgkmcnt(0)")
        exch_add(A,T)
        a(f"s_cmp_eq_u32 s59, 0\ns_cselect_b32 s34, {f2u(CS)}, 1.0\ns_cselect_b32 s35, {QG}, {KG}")
        a(f"s_lshl_b32 s37, s42, 11\ns_add_u32 s35, s35, s37\ns_add_u32 s35, s35, s43")
        a(f"s_lshl_b32 s37, s41, 11\ns_lshl_b32 s38, s59, 10\ns_add_u32 s37, s37, s38\ns_add_u32 s37, s37, {VF}")
        for j in range(4): a(f"v_cvt_pk_bf16_f32 v{T+8+j}, v{A+32+2*j}, v{A+33+2*j}")
        vm.issue("st",f"buffer_store_dwordx4 {v(T+8,4)}, v153, s[24:27], s37 offen sc1")
        for r in range(16): a(f"v_mul_f32 v{A+r}, s34, v{A+r}")
        for j in range(8): a(f"v_cvt_pk_bf16_f32 v{T+j}, v{A+2*j}, v{A+1+2*j}")
        swaps(T)
        vm.issue("st",f"buffer_store_dwordx4 {v(T,4)}, v8, s[24:27], s35 offen sc1")
        vm.issue("st",f"buffer_store_dwordx4 {v(T+4,4)}, v8, s[24:27], s35 offen offset:1024 sc1")
        a(f"v_mul_f32 v{T+20}, v{A}, v{A}")
        for r in range(1,16): a(f"v_fmac_f32 v{T+20}, v{A+r}, v{A+r}")
        a(f"v_mov_b32 v{T+21}, v{T+20}\ns_nop 1\nv_permlane32_swap_b32 v{T+20}, v{T+21}\nv_add_f32 v{T+20}, v{T+20}, v{T+21}")
        for m in ("quad_perm:[1,0,3,2]","quad_perm:[2,3,0,1]","row_half_mirror","row_mirror"):
            a(f"s_nop 1\nv_max_f32_dpp v{T+20}, v{T+20}, v{T+20} {m} row_mask:0xf bank_mask:0xf")
        a(f"s_nop 0\nv_readlane_b32 s34, v{T+20}, 0\nv_readlane_b32 s35, v{T+20}, 16\ns_mul_i32 s37, s59, 14\ns_add_u32 s37, s37, s42\ns_lshl_b32 s37, s37, 6\ns_add_u32 s37, s37, s41\ns_lshl_b32 s37, s37, 2\ns_add_u32 s37, s37, {NRM}")
        a(f"s_max_u32 s34, s34, s35\nv_mov_b32 v{T+20}, s34\ns_mov_b64 exec, 1")
        vm.issue("st",f"buffer_store_dword v{T+20}, v9, s[24:27], s37 offen sc1")
        a("s_mov_b64 exec, -1")
    def get_nonce():
        L=lab("N"); D=lab("N")
        a(f"v_readfirstlane_b32 s50, v156\nv_readfirstlane_b32 s51, v157\ns_mov_b32 s52, {SPIN}\n{L}:\ns_cmp_lg_u32 s50, 0\ns_cbranch_scc1 {D}\ns_sub_u32 s52, s52, 1\ns_cmp_eq_u32 s52, 0\ns_cbranch_scc1 {D}")
        a(f"buffer_load_dwordx2 v[156:157], v9, s[44:47], 0 offen sc1\ns_waitcnt vmcnt(0)\nv_readfirstlane_b32 s50, v156\nv_readfirstlane_b32 s51, v157\ns_branch {L}\n{D}:")
    Q=[16,24]; O=[64,80]; S=[96,112]; P=[128,136]; R=192
    PL1="buffer_load_dwordx2 v[10:11], v158, s[24:27], 0 offen sc1\nbuffer_load_dwordx2 v[14:15], v159, s[24:27], 0 offen sc1"
    PC1="v_cmp_ne_u64 s[48:49], s[50:51], v[10:11]\nv_cmp_ne_u64 s[34:35], s[50:51], v[14:15]\ns_nop 0\ns_or_b64 s[48:49], s[48:49], s[34:35]"
    def ld(vm,kind,kt):
        base=R+16*(kt%4)+(0 if kind=="K" else 8)
        a(f"s_add_u32 s42, s70, {kt*TBS}" if kind=="K" else f"s_add_u32 s42, s71, {kt*2048}")
        for m in range(2):
            vm.issue((kind,kt),f"buffer_load_dwordx4 {v(base+4*m,4)}, v8, s[24:27], s42 offen offset:{m*1024} sc1")
    def att_loads(vm):
        a(f"s_mul_i32 s33, s55, 7\ns_lshr_b32 s34, s33, 3\ns_add_u32 s35, s33, 6\ns_lshr_b32 s35, s35, 3\ns_lshl_b32 s34, s34, 8\ns_lshl_b32 s35, s35, 8")
        a(f"s_add_u32 s34, s34, {NRM}\ns_add_u32 s35, s35, {NRM}\ns_lshl_b32 s37, s56, 4\nv_and_b32 v12, 12, v13\nv_add_u32 v12, s37, v12")
        a(f"s_lshl_b32 s37, s56, 2\ns_lshl_b32 s38, s61, 1\ns_add_u32 s37, s37, s38\ns_mul_i32 s37, s37, {TBS}\ns_add_u32 s37, s37, s29\ns_add_u32 s38, s37, {TBS}")
        for qb in range(2):
            for m in range(2):
                vm.issue("q",f"buffer_load_dwordx4 {v(Q[qb]+4*m,4)}, v8, s[24:27], s{37+qb} offen offset:{m*1024} sc1")
        def l2(kind,kt):
            base=R+16*(kt%4)+(0 if kind=="K" else 8)
            a(f"s_add_u32 s37, s70, {kt*TBS}" if kind=="K" else f"s_add_u32 s37, s71, {kt*2048}")
            for m in range(2):
                vm.issue((kind,kt),f"buffer_load_dwordx4 {v(base+4*m,4)}, v8, s[24:27], s37 offen offset:{m*1024} sc1")
        l2("K",0)
        vm.issue("n","buffer_load_dword v10, v13, s[24:27], s34 offen offset:3584 sc1")
        vm.issue("n","buffer_load_dword v11, v13, s[24:27], s35 offen offset:3584 sc1")
        vm.issue("n","buffer_load_dword v14, v12, s[24:27], s34 offen sc1")
        vm.issue("n","buffer_load_dword v15, v12, s[24:27], s35 offen sc1")
        for kind,kt in (("K",1),("V",0),("V",1),("K",2),("K",3)): l2(kind,kt)
        srd(a,16,8,448*448*2); srd(a,20,14,448*448*2)
    stamp(a,1)
    for st in range(14):
        if st==9: vm.wait("st")
        vm.wait(("d",st),"lgkmcnt(0)"); a("s_barrier")
        if st==0: stamp(a,2)
        reads(st,0)
        if st==8: dma(10); dma(11)
        elif st>=1 and st!=7 and st+3<14: dma(st+3)
        if st==9:
            L=lab("F")
            a(f"s_cmp_lg_u32 s31, 0\ns_cbranch_scc1 {L}\ns_lshl_b32 s34, s54, 5\ns_add_u32 s34, s34, s53\ns_lshl_b32 s34, s34, 7\ns_add_u32 s34, s34, {F1}")
            flag_store(a,34); a(f"{L}:")
        if st==13:
            for x in PL1.split("\n"): vm.issue("pl",x)
        if st>=1: mm(st-1,1)
        reads(st,1); a("s_waitcnt lgkmcnt(7)")
        mm(st,0)
        if st==7:
            stamp(a,3)
            a("s_nop 4"); exch_write(16); a("s_waitcnt lgkmcnt(0)\ns_barrier"); exch_read(160); vm.wait("nonce"); get_nonce(); epiA()
            stamp(a,4)
    a("s_waitcnt lgkmcnt(0)"); mm(13,1)
    stamp(a,5)
    vm.wait("pl"); spin(a,PC1,PL1)
    q0=len(vm.q)
    att_loads(vm)
    A=64; T=160
    a(f"s_mov_b32 s34, {f2u(LOG2E)}\nv_mov_b32 v{T+24}, {f2u(-1e-6*LOG2E)}\nv_mov_b32 v{T+25}, {f2u(1e-6)}")
    exch_write(A); a("s_waitcnt lgkmcnt(0)\ns_barrier"); exch_read(T); a("s_waitcnt lgkmcnt(0)"); exch_add(A,T)
    a(f"s_mul_i32 s37, s59, 14592\ns_mul_i32 s38, s41, {TBV}\ns_add_u32 s37, s37, s38\ns_add_u32 s37, s37, {VT}")
    for j in range(4): a(f"v_cvt_pk_bf16_f32 v{T+26+j}, v{A+32+2*j}, v{A+33+2*j}")
    vm.issue("bst",f"buffer_store_dwordx4 {v(T+26,4)}, v155, s[24:27], s37 offen sc1")
    for r in range(16): a(f"v_fma_f32 v{T+r}, v{A+r}, s34, v{T+24}")
    for r in range(16): a(f"v_exp_f32 v{T+r}, v{T+r} clamp\nv_max_f32 v{A+r}, v{A+r}, v{T+25}")
    for r in range(16): a(f"v_add_f32 v{A+r}, v{A+r}, v{T+r}")
    for j in range(8): a(f"v_cvt_pk_bf16_f32 v{T+16+j}, v{A+2*j}, v{A+1+2*j}")
    a("s_cmp_eq_u32 s59, 0\ns_cbranch_scc0 L_BK")
    a(f"s_lshl_b32 s37, s42, 11\ns_add_u32 s37, s37, s43\ns_add_u32 s37, s37, {PQG}")
    swaps(T+16)
    vm.issue("bst",f"buffer_store_dwordx4 {v(T+16,4)}, v8, s[24:27], s37 offen sc1")
    vm.issue("bst",f"buffer_store_dwordx4 {v(T+20,4)}, v8, s[24:27], s37 offen offset:1024 sc1")
    a("s_branch L_ATT\nL_BK:")
    a(f"s_add_u32 s37, s43, {PKT}\nbuffer_store_dwordx4 {v(T+16,4)}, v154, s[24:27], s37 offen sc1\ns_add_u32 s37, s37, 14336\nbuffer_store_dwordx4 {v(T+20,4)}, v154, s[24:27], s37 offen sc1")
    a("s_branch L_ATT")
    a("L_IDLE:\nbuffer_load_dwordx2 v[156:157], v9, s[44:47], 0 offen sc1")
    a("s_sub_u32 s34, s30, 28\ns_lshl_b32 s35, s32, 2\ns_add_u32 s41, s34, s35\ns_lshl_b32 s43, s41, 3\ns_add_u32 s43, s43, s31")
    for r in range(4): a(f"v_mov_b32 v{16+r}, 0\nv_mov_b32 v{20+r}, 0x3f803f80")
    a(f"s_lshl_b32 s34, s43, 14\ns_add_u32 s34, s34, {OF}")
    for k in range(16):
        a(f"buffer_store_dwordx4 v[16:19], v8, s[24:27], s34 offen offset:{(k%4)*1024} sc1")
        if k%4==3: a("s_add_u32 s34, s34, 4096")
    a(f"v_lshrrev_b32 v5, 2, v1\nv_lshlrev_b32 v5, 9, v5\nv_and_b32 v6, 1, v1\nv_lshl_add_u32 v5, v6, 6, v5\nv_bfe_u32 v6, v1, 1, 1\nv_lshl_add_u32 v5, v6, 8, v5")
    a(f"s_lshl_b32 s34, s43, 13\ns_add_u32 s34, s34, {VF+176}\nbuffer_store_dwordx4 v[20:23], v5, s[24:27], s34 offen sc1")
    a(f"s_mul_i32 s34, s43, 272\ns_add_u32 s34, s34, {KVS}\ns_mov_b64 exec, 0x1ffff\nbuffer_store_dwordx4 v[16:19], v8, s[24:27], s34 offen sc1")
    a(f"s_mul_i32 s34, s43, 7296\ns_add_u32 s34, s34, {VT+7168}\ns_mov_b64 exec, 1\nbuffer_store_dwordx4 v[20:23], v9, s[24:27], s34 offen sc1\ns_mov_b64 exec, -1")
    a("s_waitcnt vmcnt(0)"); get_nonce()
    L=lab("F")
    a(f"s_barrier\ns_cmp_lg_u32 s31, 0\ns_cbranch_scc1 {L}\ns_lshl_b32 s34, s41, 7\ns_add_u32 s34, s34, {F0}")
    flag_store(a,34); a(f"{L}:")
    srd(a,16,8,448*448*2); srd(a,20,14,448*448*2)
    a("s_and_b32 s34, s43, 31\ns_mul_i32 s34, s34, 13312")
    for k in range(13):
        a(f"buffer_load_dwordx4 v[16:19], v8, s[16:19], s34 offen\nbuffer_load_dwordx4 v[20:23], v8, s[20:23], s34 offen\ns_add_u32 s34, s34, 1024")
    stamp(a,1); stamp(a,2); stamp(a,3); stamp(a,4)
    a(PL1); a("s_waitcnt vmcnt(0)"); stamp(a,5); spin(a,PC1,PL1)
    vd=VM(a); att_loads(vd)
    a("s_mov_b32 s18, 0\ns_mov_b32 s22, 0\ns_movk_i32 s34, 0x100")
    for k in range(3): vd.issue("bst","buffer_store_dword v9, v9, s[44:47], s34 offen")
    assert [t[0] for t in vd.q]==[t[0] for t in vm.q[q0:]]
    a("L_ATT:")
    stamp(a,6)
    if CFG["stop"]=="P":
        a("s_waitcnt vmcnt(0)"); stamp_out(a,7); a("L_END:\ns_endpgm"); return a
    def W(vmx,tag):
        if vmx: vmx.wait(tag)
        else: a("s_waitcnt vmcnt(0)")
    def I(vmx,tag,txt):
        if vmx: vmx.issue(tag,txt,True)
        else: a(txt)
    PL2="buffer_load_dwordx2 v[14:15], v10, s[24:27], 0 offen sc1"
    def i1_a(vmx):
        a(f"s_mul_i32 s33, s55, 7\ns_lshr_b32 s34, s33, 4\ns_add_u32 s35, s33, 6\ns_lshr_b32 s35, s35, 4\ns_sub_u32 s35, s35, s34\ns_lshl_b32 s35, s35, 15")
        a(f"s_lshl_b32 s34, s34, 15\ns_lshl_b32 s37, s56, 11\ns_add_u32 s34, s34, s37\ns_add_u32 s34, s34, {F2}")
        a("v_and_b32 v10, 15, v1\nv_lshlrev_b32 v10, 7, v10\nv_bfe_u32 v11, v1, 4, 1\nv_mul_u32_u24 v11, s35, v11\nv_add3_u32 v10, v10, v11, s34")
        I(vmx,"p2",PL2)
        a("v_and_b32 v11, 19, v1\nv_bfe_u32 v12, v1, 2, 1\nv_lshl_add_u32 v11, v12, 3, v11\nv_bfe_u32 v12, v1, 3, 1\nv_lshl_add_u32 v11, v12, 2, v11")
        a("v_lshrrev_b32 v5, 5, v1\nv_mul_u32_u24 v6, 7168, v5\nv_lshl_add_u32 v11, v11, 4, v6")
        a("v_and_b32 v12, 31, v1\nv_add_u32 v7, 20, v12\nv_lshrrev_b32 v7, 5, v7\nv_sub_u32 v2, v12, v7\nv_lshrrev_b32 v7, 4, v12\nv_sub_u32 v2, v2, v7\nv_add_u32 v7, 4, v12\nv_lshrrev_b32 v7, 5, v7\nv_sub_u32 v2, v2, v7")
        a("s_lshl_b32 s33, s33, 2\nv_add_u32 v2, s33, v2\nv_and_b32 v12, 11, v12\nv_cmp_eq_u32 s[48:49], 11, v12\nv_mov_b32 v7, 448\ns_nop 0\nv_cndmask_b32 v2, v2, v7, s[48:49]")
        a("v_lshl_add_u32 v6, v5, 7, v6\nv_lshl_add_u32 v12, v2, 4, v6")
    def i1_b(vmx):
        W(vmx,"p2"); spin(a,"v_cmp_ne_u64 s[48:49], s[50:51], v[14:15]\ns_nop 0",PL2)
        a(f"s_mul_i32 s34, s56, {4*TBS}\ns_lshr_b32 s35, s29, 2\ns_add_u32 s34, s34, s35\ns_add_u32 s34, s34, {PKT}\ns_mul_i32 s35, s56, {4*TBV}\ns_add_u32 s35, s35, {VT}")
        for i in range(8):
            I(vmx,"pay",f"buffer_load_dwordx4 {v(32+4*i,4)}, v11, s[24:27], s34 offen sc1")
            I(vmx,"pay",f"buffer_load_dwordx4 {v(144+4*i,4)}, v12, s[24:27], s35 offen sc1")
            if i<7: a("s_add_u32 s34, s34, 14336\ns_add_u32 s35, s35, 14592")
    def i1_c(vmx):
        W(vmx,"pay")
        for i in range(8): a(mfma(176,32+4*i,144+4*i,"0" if i==0 else None))
    def i1_d(vmx):
        a(f"s_lshl_b32 s34, s55, 12\ns_add_u32 s34, s34, {KVS}")
        for r in range(16): I(vmx,"at",f"buffer_atomic_add_f32 v{176+r}, v13, s[24:27], s34 offen offset:{r*256}")
    def i1_e(vmx):
        W(vmx,"at")
        a(f"s_lshl_b32 s34, s55, 7\ns_add_u32 s34, s34, {CNT}\nv_mov_b32 v14, 1\ns_mov_b64 exec, 1")
        I(vmx,"cn","buffer_atomic_add v14, v9, s[24:27], s34 offen"); a("s_mov_b64 exec, -1")
    PL4="buffer_load_dword v14, v9, s[24:27], s33 offen sc1"
    def i2_a(vmx):
        a(f"s_lshl_b32 s33, s55, 7\ns_add_u32 s33, s33, {CNT}"); I(vmx,"p4",PL4)
    def i2_b(vmx):
        W(vmx,"p4"); spin(a,"v_cmp_gt_u32 s[48:49], 16, v14\ns_nop 0",PL4)
        a(f"s_lshl_b32 s34, s55, 12\ns_add_u32 s34, s34, {KVS}\ns_lshl_b32 s35, s56, 2\ns_add_u32 s35, s35, s60\ns_mul_i32 s35, s35, {TBS}\ns_add_u32 s35, s35, s29\ns_add_u32 s35, s35, {PQG}")
        for r in range(16): I(vmx,"kv",f"buffer_load_dword v{144+r}, v13, s[24:27], s34 offen offset:{r*256} sc1")
        for m in range(2): I(vmx,"kv",f"buffer_load_dwordx4 {v(168+4*m,4)}, v8, s[24:27], s35 offen offset:{m*1024} sc1")
    def qmask(b):
        a(f"v_cndmask_b32 v{b}, v{b}, 0, s[38:39]\nv_cndmask_b32 v{b+1}, v{b+1}, 0, s[38:39]\nv_cndmask_b32 v{b+6}, v{b+6}, 0, s[40:41]\nv_cndmask_b32 v{b+7}, v{b+7}, 0, s[40:41]")
    def i2_c(vmx):
        W(vmx,"kv")
        for j in range(8): a(f"v_cvt_pk_bf16_f32 v{160+j}, v{144+2*j}, v{145+2*j}")
        qmask(168); a("s_nop 1")
        a(mfma(176,160,168,"0")); a(mfma(176,164,172))
    def i2_d(vmx):
        a(f"v_add_f32 v15, {f2u(1e-6)}, v183\nv_rcp_f32 v15, v15\ns_lshl_b32 s34, s56, 2\ns_add_u32 s34, s34, s60\ns_lshl_b32 s34, s34, 4\ns_add_u32 s34, s34, s55\ns_lshl_b32 s34, s34, 11\ns_add_u32 s34, s34, {OF+2*MB}")
        for r in range(16): a(f"v_mul_f32 v{176+r}, v{176+r}, v15" if r%8!=7 else f"v_mov_b32 v{176+r}, {TAG}")
        for j in range(8): a(f"v_cvt_pk_bf16_f32 v{160+j}, v{176+2*j}, v{177+2*j}")
        for m in range(2): I(vmx,"ob",f"buffer_store_dwordx4 {v(160+4*m,4)}, v8, s[24:27], s34 offen offset:{m*1024} sc1")
    def special(f,vmx):
        L=lab("S"); a(f"s_cbranch_vccz {L}"); f(vmx); a(f"{L}:")
    def wo_dma(vmx,k):
        p,j=divmod(k,7)
        a(f"s_add_u32 m0, s36, {p*57344+j*8192}\ns_mov_b32 s43, {j*64*896}")
        t=f"buffer_load_dwordx4 v4, s[{20-4*p}:{23-4*p}], s43 offen lds"
        if vmx: vmx.issue("wo",t)
        else: a(t)
    def ofr(p,F):
        return "\n".join(f"buffer_load_dwordx4 {v(F+4*f,4)}, v8, s[24:27], s{62+f//4} offen offset:{(f%4)*1024} sc1" for f in range(8))
    def ofr_addr(p):
        a(f"s_lshl_b32 s62, s53, 1\ns_add_u32 s62, s62, s57\ns_lshl_b32 s62, s62, 2\ns_lshr_b32 s63, s31, 1\ns_add_u32 s62, s62, s63\ns_lshl_b32 s62, s62, 13\ns_add_u32 s62, s62, {OF+p*2*MB}\ns_add_u32 s63, s62, 4096")
    a("s_bitcmp1_b32 s55, 0\ns_cselect_b32 s38, -1, 0\ns_mov_b32 s39, 0\ns_mov_b32 s40, 0\ns_cselect_b32 s41, 0, -1")
    vm.wait("n")
    a("v_add_f32 v10, v10, v11\nv_add_f32 v14, v14, v15")
    qmask(Q[0]); qmask(Q[1])
    for m in ("quad_perm:[1,0,3,2]","quad_perm:[2,3,0,1]","row_half_mirror","row_mirror"):
        a(f"v_max_f32_dpp v10, v10, v10 {m} row_mask:0xf bank_mask:0xf\ns_nop 0")
        if "quad" in m: a(f"v_max_f32_dpp v14, v14, v14 {m} row_mask:0xf bank_mask:0xf")
        else: a("s_nop 0")
    a("v_readlane_b32 s32, v10, 0\nv_readlane_b32 s33, v10, 16\nv_readlane_b32 s34, v10, 32\nv_readlane_b32 s35, v10, 48\ns_nop 1")
    a("s_max_u32 s32, s32, s33\ns_max_u32 s34, s34, s35\ns_max_u32 s32, s32, s34")
    a("v_mul_f32 v14, s32, v14\ns_nop 0\nv_readfirstlane_b32 s32, v14\ns_nop 1")
    a(f"s_cmp_le_u32 s32, {f2u(TH*TH)}\ns_cbranch_scc0 L_SLOW")
    def Kf(kt,m): return R+16*(kt%4)+4*m
    def Vf(kt,m): return R+16*(kt%4)+8+4*m
    NT=32
    def qk(i,m):
        kt,qb=divmod(i,2)
        if m==0 and qb==0: vm.wait(("K",kt))
        a(mfma(S[qb],Kf(kt,m),Q[qb]+4*m,"0" if m==0 else None))
    def pv(i,m):
        kt,qb=divmod(i,2)
        if m==0 and qb==0: vm.wait(("V",kt))
        a(mfma(O[qb],Vf(kt,m),P[qb]+4*m,"0" if (kt==0 and m==0) else None))
    def e(i,r): qb=i%2; return f"v_exp_f32 v{S[qb]+r}, v{S[qb]+r}"
    def c(i,j): qb=i%2; return f"v_cvt_pk_bf16_f32 v{P[qb]+j}, v{S[qb]+2*j}, v{S[qb]+2*j+1}"
    t1=CFG["t1"]; t2=CFG["t2"]
    ins={t1:i1_a,t1+2:i1_b,t1+5:i1_c,t1+6:i1_d,t1+11:i1_e,t2:i2_a,t2+2:i2_b,t2+5:i2_c,t2+6:i2_d}
    stamp(a,7)
    a("s_setprio 3\ns_cmp_eq_u32 s31, 7\ns_cselect_b64 vcc, -1, 0")
    qk(0,0); qk(0,1)
    a("s_nop 11")
    for i in range(NT):
        seq=[e(i,0),e(i,1),e(i,2),c(i,0),e(i,3),e(i,4),c(i,1),e(i,5),e(i,6),c(i,2),e(i,7),e(i,8),c(i,3),e(i,9),e(i,10),c(i,4),e(i,11),e(i,12),c(i,5),e(i,13),e(i,14),c(i,6),e(i,15)]
        if i in CFG["prio"]: a(f"s_setprio {2-CFG['prio'].index(i)}")
        a(seq[0])
        if i>0: a(c(i-1,7))
        if i+1<NT: qk(i+1,0)
        for x in seq[1:5]: a(x)
        if i+1<NT: qk(i+1,1)
        for x in seq[5:11]: a(x)
        if i>0: pv(i-1,0)
        if i==t2:
            vm.drop_sp(); a("s_cmp_lt_u32 s31, 4\ns_cselect_b64 vcc, -1, 0")
        if i in ins: special(ins[i],vm)
        if i==CFG["f2"]:
            vm.wait("bst"); flag_store(a,28,vm)
        j=i//2
        if i%2==0:
            if j+2<16: ld(vm,"V",j+2)
        else:
            if j+4<16: ld(vm,"K",j+4)
        if CFG["wo0"]<=i<CFG["wo0"]+14: wo_dma(vm,i-CFG["wo0"])
        if i==30:
            vm.drop_sp(); ofr_addr(1)
            for x in ofr(1,144).split("\n"): vm.issue("of",x)
        for x in seq[11:17]: a(x)
        if i>0: pv(i-1,1)
        for x in seq[17:23]: a(x)
    a("s_nop 0"); a(c(NT-1,7)); a("s_nop 1")
    pv(NT-1,0); pv(NT-1,1)
    a("L_TAIL:")
    stamp(a,8)
    def red_write(B,rank,dmul,dadd,base):
        for g in range(4):
            L=lab("R"); E=lab("R")
            a(f"s_sub_u32 s34, s{rank}, {g+1}\ns_and_b32 s34, s34, 3\ns_cmp_eq_u32 s34, 3\ns_cbranch_scc1 {L}")
            a(f"s_lshl_b32 s34, s34, 11\ns_mul_i32 s35, s{dadd}, 6144\ns_add_u32 s34, s34, s35\ns_add_u32 s34, s34, {base+g*dmul*6144}\nv_add_u32 v10, s34, v8")
            a(f"ds_write_b128 v10, {v(B+8*g,4)}\nds_write_b128 v10, {v(B+8*g+4,4)} offset:1024\ns_branch {E}\n{L}:")
            for r in range(8): a(f"v_mov_b32 v{96+r}, v{B+8*g+r}")
            a(f"{E}:")
    def red_read(base):
        a(f"s_mul_i32 s34, s31, 6144\ns_add_u32 s34, s34, {base}\nv_add_u32 v10, s34, v8")
        for q in range(6): a(f"ds_read_b128 {v(104+4*q,4)}, v10 offset:{q*1024}")
        a("s_waitcnt lgkmcnt(2)")
        for r in range(8): a(f"v_add_f32 v{96+r}, v{96+r}, v{104+r}")
        a("s_waitcnt lgkmcnt(0)")
        for r in range(8): a(f"v_add_f32 v{112+r}, v{112+r}, v{120+r}")
        for r in range(8): a(f"v_add_f32 v{96+r}, v{96+r}, v{112+r}")
    a("s_lshl_b32 s33, s61, 2\ns_lshr_b32 s32, s31, 1")
    a("v_lshrrev_b32 v6, 5, v1\nv_bfe_u32 v7, v1, 2, 2\nv_lshl_add_u32 v11, v6, 2, v7\nv_min_u32 v7, 2, v7\nv_mad_u32_u24 v12, v6, 3, v7\nv_add_u32 v12, 8, v12")
    a("v_bfe_u32 v5, v1, 4, 1\nv_lshlrev_b32 v5, 5, v5\nv_and_b32 v7, 3, v1\nv_lshl_add_u32 v5, v7, 3, v5\ns_mul_i32 s34, s32, 14336\nv_add_u32 v5, s34, v5")
    for m in range(2):
        for u in range(2):
            d=240+2*m+u
            if m: a(f"v_add_u32 v{11+u}, 14, v{11+u}")
            a(f"v_bfe_u32 v7, v{11+u}, 1, 1\nv_lshl_add_u32 v{d}, v{11+u}, 7, v5\nv_lshl_add_u32 v{d}, v7, 6, v{d}\nv_xor_b32 v{d+4}, 64, v{d}")
    red_write(64,60,1,33,EX)
    a("s_lshl_b32 s34, s53, 1\ns_add_u32 s34, s34, s57\ns_lshl_b32 s34, s34, 5\nv_and_b32 v5, 31, v1\nv_add_u32 v5, s34, v5\nv_mul_u32_u24 v5, 1792, v5\nv_lshl_add_u32 v248, v6, 4, v5")
    a("s_lshl_b32 s70, s54, 7\ns_lshl_b32 s34, s32, 5\ns_add_u32 s70, s70, s34\ns_add_u32 s71, s70, 896")
    a("s_lshl_b32 s34, s56, 2\ns_lshl_b32 s35, s61, 1\ns_add_u32 s34, s34, s35\ns_lshr_b32 s35, s60, 1\ns_add_u32 s34, s34, s35\ns_lshl_b32 s34, s34, 4\ns_add_u32 s34, s34, s55")
    a(f"s_lshl_b32 s34, s34, 1\ns_and_b32 s35, s60, 1\ns_add_u32 s34, s34, s35\ns_lshl_b32 s34, s34, 10\ns_add_u32 s37, s34, {OF}")
    srd(a,44,64,2048*896*2)
    vm.wait("wo"); a("s_waitcnt lgkmcnt(0)\ns_barrier")
    red_read(EX)
    a("v_rcp_f32 v11, v103\ns_nop 0")
    for r in range(7): a(f"v_mul_f32 v{96+r}, v{96+r}, v11")
    a(f"v_mov_b32 v103, {TAG}")
    for j in range(4): a(f"v_cvt_pk_bf16_f32 v{104+j}, v{96+2*j}, v{97+2*j}")
    vm.issue("oa","buffer_store_dwordx4 v[104:107], v8, s[24:27], s37 offen sc1")
    stamp(a,9)
    a("s_cmp_ge_u32 s30, 28\ns_cbranch_scc1 L_FIN")
    if CFG["stop"]=="ATT": a("s_branch L_FIN")
    def tagcmp(F):
        return (f"v_min3_u32 v11, v{F+3}, v{F+7}, v{F+11}\nv_min3_u32 v12, v{F+15}, v{F+19}, v{F+23}\nv_min3_u32 v11, v11, v{F+27}, v{F+31}\nv_min_u32 v11, v11, v12\n"
                f"v_cmp_gt_u32 s[48:49], s42, v11\ns_nop 0")
    def oproj(F):
        def rd(f,fs):
            hl,m=divmod(f,2)
            for nt in range(2):
                for u in range(2): a(f"ds_read_b64_tr_b16 {v(224+8*fs+4*nt+2*u,2)}, v{240+4*nt+2*m+u} offset:{hl*3584}")
        rd(0,0)
        return rd
    def oproj2(F,rd):
        for f in range(8):
            fs=f&1
            if f<7: rd(f+1,fs^1); a("s_waitcnt lgkmcnt(4)")
            else: a("s_waitcnt lgkmcnt(0)")
            a(mfma(32,224+8*fs,F+4*f,"0" if f==0 else None)); a(mfma(48,228+8*fs,F+4*f,"0" if f==0 else None))
    def ostore(so):
        for j in range(4): a(f"v_cvt_pk_bf16_f32 v{104+j}, v{96+2*j}, v{97+2*j}")
        a(f"s_nop 1\nv_permlane32_swap_b32 v104, v106\nv_permlane32_swap_b32 v105, v107\nbuffer_store_dwordx4 v[104:107], v248, s[44:47], s{so} offen")
    a(f"s_mov_b32 s42, {TAG}")
    rd=oproj(144)
    vm.wait("of"); spin(a,tagcmp(144),ofr(1,144))
    oproj2(144,rd)
    ofr_addr(0)
    for r in range(8): a(f"v_add_u32 v{240+r}, 57344, v{240+r}")
    a("s_barrier")
    red_write(32,32,2,57,EX)
    a(ofr(0,192))
    a("s_waitcnt lgkmcnt(0)\ns_barrier")
    red_read(EX); ostore(71)
    stamp(a,10)
    rd=oproj(192)
    a("s_waitcnt vmcnt(1)"); spin(a,tagcmp(192),ofr(0,192))
    stamp(a,11)
    oproj2(192,rd)
    a("s_nop 11")
    red_write(32,32,2,57,0)
    a("s_waitcnt lgkmcnt(0)\ns_barrier")
    red_read(0); ostore(70)
    a("L_FIN:")
    stamp_out(a,12)
    a("L_END:\ns_endpgm")
    a("L_SLOW:\ns_waitcnt vmcnt(0)"); flag_store(a,28)
    for k in range(14): wo_dma(None,k)
    a("s_cmp_eq_u32 s31, 7\ns_cbranch_scc0 L_S1")
    i1_a(None); i1_b(None); i1_c(None); a("s_nop 15"); i1_d(None); i1_e(None)
    a("L_S1:\nv_mov_b32 v10, 0xff800000\nv_mov_b32 v11, 0xff800000\ns_mov_b32 s42, s70\ns_mov_b32 s43, 16\nL_S2:")
    a(f"buffer_load_dwordx4 v[192:195], v8, s[24:27], s42 offen sc1\nbuffer_load_dwordx4 v[196:199], v8, s[24:27], s42 offen offset:1024 sc1\ns_waitcnt vmcnt(0)")
    for qb in range(2):
        a(mfma(S[qb],192,Q[qb],"0")); a(mfma(S[qb],196,Q[qb]+4))
    a("s_nop 15")
    for qb in range(2):
        for r in range(0,16,2): a(f"v_max3_f32 v{10+qb}, v{10+qb}, v{S[qb]+r}, v{S[qb]+r+1}")
    a(f"s_add_u32 s42, s42, {TBS}\ns_sub_u32 s43, s43, 1\ns_cmp_lg_u32 s43, 0\ns_cbranch_scc1 L_S2")
    a("v_mov_b32 v14, v10\nv_mov_b32 v15, v11\ns_nop 1\nv_permlane32_swap_b32 v10, v14\nv_permlane32_swap_b32 v11, v15")
    a("v_max_f32 v10, v10, v14\nv_max_f32 v11, v11, v15")
    a(f"s_barrier\ns_lshl_b32 s34, s31, 9\ns_add_u32 s34, s34, {EX}\nv_add_u32 v12, s34, v13\nds_write_b32 v12, v10\nds_write_b32 v12, v11 offset:256")
    a(f"s_lshl_b32 s34, s61, 11\ns_add_u32 s34, s34, {EX}\nv_add_u32 v12, s34, v13\ns_waitcnt lgkmcnt(0)\ns_barrier")
    for k in range(4): a(f"ds_read_b32 v{192+k}, v12 offset:{k*512}\nds_read_b32 v{196+k}, v12 offset:{k*512+256}")
    a("s_waitcnt lgkmcnt(0)\ns_barrier")
    for qb in range(2):
        b=192+4*qb
        a(f"v_max3_f32 v{b}, v{b}, v{b+1}, v{b+2}\nv_max_f32 v{10+qb}, v{b}, v{b+3}")
    for r in range(64,96): a(f"v_mov_b32 v{r}, 0")
    a("s_mov_b32 s42, s70\ns_mov_b32 s43, 16\ns_mov_b32 s37, s71\nL_S3:")
    a(f"buffer_load_dwordx4 v[192:195], v8, s[24:27], s42 offen sc1\nbuffer_load_dwordx4 v[196:199], v8, s[24:27], s42 offen offset:1024 sc1")
    a(f"buffer_load_dwordx4 v[200:203], v8, s[24:27], s37 offen sc1\nbuffer_load_dwordx4 v[204:207], v8, s[24:27], s37 offen offset:1024 sc1\ns_waitcnt vmcnt(0)")
    for qb in range(2):
        a(mfma(S[qb],192,Q[qb],"0")); a(mfma(S[qb],196,Q[qb]+4))
    a("s_nop 15")
    for qb in range(2):
        for r in range(16): a(f"v_sub_f32 v{S[qb]+r}, v{S[qb]+r}, v{10+qb}")
        for r in range(16): a(e(qb,r))
        a("s_nop 0")
        for j in range(8): a(c(qb,j))
    a("s_nop 1")
    for qb in range(2):
        a(mfma(O[qb],200,P[qb])); a(mfma(O[qb],204,P[qb]+4))
    a(f"s_add_u32 s42, s42, {TBS}\ns_add_u32 s37, s37, 2048\ns_sub_u32 s43, s43, 1\ns_cmp_lg_u32 s43, 0\ns_cbranch_scc1 L_S3")
    a("s_cmp_lt_u32 s31, 4\ns_cbranch_scc0 L_S4")
    i2_a(None); i2_b(None); i2_c(None); a("s_nop 15"); i2_d(None)
    a("L_S4:"); ofr_addr(1); a(ofr(1,144)); a("s_waitcnt vmcnt(0)\ns_branch L_TAIL")
    return a
def emit(path):
    uid[0]=0
    a=gen(); N="concat_heads__softmax_full_mha__linear_attn_block__prompt_kernel"
    for e_ in check(a.lines,"fused"): print("HAZARD",e_)
    hdr="; generated by work/gen/fused.py (hand-written generator)\n; @launch grid=(256,1,1) block=(512,1,1) lds=163840\n"
    kd=f""".section .rodata,"a"
.p2align 6
.amdhsa_kernel {N}
  .amdhsa_next_free_vgpr 256
  .amdhsa_next_free_sgpr 102
  .amdhsa_accum_offset 256
  .amdhsa_group_segment_fixed_size 0
  .amdhsa_kernarg_size 72
  .amdhsa_user_sgpr_count 2
  .amdhsa_user_sgpr_kernarg_segment_ptr 1
  .amdhsa_system_sgpr_workgroup_id_x 1
.end_amdhsa_kernel
"""
    open(path,"w").write(hdr+'.amdgcn_target "amdgcn-amd-amdhsa--gfx950"\n.text\n'+a.text()+kd)
if __name__=="__main__":
    if "--instr" in sys.argv: INSTR=True
    for x in sys.argv[2:]:
        if "=" in x:
            k,val=x.split("="); CFG[k]=eval(val)
    emit(sys.argv[1])
```

```python
import struct, sys
from asmlib import *
def f2u(x): return struct.unpack("<I",struct.pack("<f",x))[0]
MB=1<<20
TBS=28672
QG=0; KG=2*MB; VF=4*MB; PQG=6*MB; PKT=8*MB; VT=10*MB; OF=12*MB
TBV=4*456*16
KVS=16*MB
CNT=KVS+65536
NRM=16*MB+131072
FL=17*MB
F1=FL; F2=FL+128*128; F0=FL+256*128
TBK=32768
WS_SIZE=18*MB
EX=0; WOA=49152; WOB=106496
TAG=0x00800000
CFG=dict(ins=(4,5,12,17,22,27,28),woe=7,rot=1,la=1,prio=(16,26,30),stop=None,sleep=4)
LOG2E=1.4426950408889634
CS=28**-0.5*LOG2E
TH=60.0
SPIN=20000
MF="v_mfma_f32_32x32x16_bf16"
INSTR=False
STAMP=32*MB
def mfma(d,a,b,c=None):
    return f"{MF} {v(d,16)}, {v(a,4)}, {v(b,4)}, {v(d,16) if c is None else c}"
def srd(a,d,base,size):
    a(f"s_mov_b32 s{d}, s{base}\ns_and_b32 s{d+1}, s{base+1}, 0xffff\ns_mov_b32 s{d+2}, {size}\ns_mov_b32 s{d+3}, 0x20000")
class VM:
    def __init__(self,a): self.a=a; self.q=[]; self.done=0
    def issue(self,tag,txt,sp=False): self.a(txt); self.q.append((tag,sp))
    def wait(self,tag,extra=""):
        idx=max(i for i,t in enumerate(self.q) if t[0]==tag)
        sp=self.q[idx][1]
        ns=min(63,len(self.q)-1-idx); nb=min(63,sum(1 for t in self.q[idx+1:] if not t[1]))
        if sp:
            self.a(f"s_waitcnt vmcnt({ns}) {extra}"); return
        if idx<self.done:
            if extra: self.a(f"s_waitcnt {extra}")
            return
        self.done=idx+1
        if ns==nb: self.a(f"s_waitcnt vmcnt({nb}) {extra}")
        else:
            L=lab("W"); self.a(f"s_waitcnt vmcnt({ns}) {extra}\ns_cbranch_vccnz {L}\ns_waitcnt vmcnt({nb})\n{L}:")
    def drop_sp(self):
        nd=sum(1 for t in self.q[:self.done] if not t[1])
        self.q=[t for t in self.q if not t[1]]; self.done=nd
NSTAMP=12
def stamp(a,i,real=False):
    if not INSTR: return
    a(f"s_memtime s[{72+2*i}:{73+2*i}]")
    if real: a(f"s_memrealtime s[{98+2*(0 if i==0 else 1)}:{99+2*(0 if i==0 else 1)}]")
    a("s_waitcnt lgkmcnt(0)")
def stamp_out(a,n):
    if not INSTR: return
    a("s_waitcnt vmcnt(0)")
    stamp(a,n,True)
    a("s_mov_b64 exec, 1")
    a(f"s_lshl_b32 s62, s2, 3\ns_add_u32 s62, s62, s31\ns_lshl_b32 s62, s62, 7\ns_add_u32 s62, s62, {STAMP}\ns_mov_b32 s26, {64*MB}\nv_mov_b32 v0, 0")
    for i in range(n+1):
        a(f"v_mov_b32 v1, s{72+2*i}\nbuffer_store_dword v1, v0, s[24:27], s62 offen offset:{4*i}")
    a("v_mov_b32 v1, s98\nbuffer_store_dword v1, v0, s[24:27], s62 offen offset:64\nv_mov_b32 v1, s100\nbuffer_store_dword v1, v0, s[24:27], s62 offen offset:68")
uid=[0]
def lab(p):
    uid[0]+=1; return f"L{p}{uid[0]}"
def spin(a, cmp, loads):
    L=lab("P"); D=lab("D")
    a(f"s_mov_b32 s52, {SPIN}\n{L}:\n{cmp}\ns_cmp_eq_u64 s[48:49], 0\ns_cbranch_scc1 {D}\ns_sub_u32 s52, s52, 1\ns_cbranch_scc1 {D}")
    a(f"s_sleep {CFG['sleep']}\n{loads}\ns_waitcnt vmcnt(0)\ns_branch {L}\n{D}:")
def flag_store(a, soff, vm=None, t=14):
    a(f"v_mov_b32 v{t}, s50\nv_mov_b32 v{t+1}, s51\ns_mov_b64 exec, 1")
    x=f"buffer_store_dwordx2 v[{t}:{t+1}], v9, s[24:27], s{soff} offen sc1"
    if vm: vm.issue("flag",x)
    else: a(x)
    a("s_mov_b64 exec, -1")

def gen():
    a=Asm(); N="concat_heads__softmax_full_mha__linear_attn_block__prompt_kernel"
    NB=3 if CFG["la"]==1 else 4
    a(f".globl {N}\n.p2align 8\n.type {N},@function\n{N}:")
    a("s_cmp_ge_u32 s2, 256\ns_cbranch_scc1 L_END")
    a("s_load_dwordx8 s[4:11], s[0:1], 0\ns_load_dwordx4 s[12:15], s[0:1], 32\ns_load_dwordx4 s[64:67], s[0:1], 48\ns_load_dwordx2 s[68:69], s[0:1], 64\ns_memrealtime s[50:51]")
    stamp(a,0,True)
    a("v_lshrrev_b32 v2, 6, v0\nv_and_b32 v1, 63, v0\ns_and_b32 s32, s2, 7\ns_lshr_b32 s30, s2, 3")
    a("v_readfirstlane_b32 s31, v2")
    a("s_mul_i32 s34, s30, 37\ns_lshr_b32 s34, s34, 8")
    a("s_mul_i32 s35, s34, 7\ns_sub_u32 s54, s30, s35")
    a("s_lshl_b32 s33, s32, 2\ns_add_u32 s53, s33, s34")
    a("s_and_b32 s28, s32, 1\ns_lshr_b32 s33, s32, 1\ns_lshl_b32 s33, s33, 2\ns_add_u32 s58, s33, s34")
    a("s_and_b32 s60, s31, 3\ns_lshr_b32 s61, s31, 2\ns_and_b32 s57, s31, 1")
    if CFG["rot"]==1:
        a("s_lshl_b32 s35, s34, 1\ns_add_u32 s35, s35, s54\ns_cmp_ge_u32 s35, 7\ns_cselect_b32 s36, 7, 0\ns_sub_u32 s35, s35, s36\ns_cmp_ge_u32 s35, 7\ns_cselect_b32 s36, 7, 0\ns_sub_u32 s40, s35, s36")
    elif CFG["rot"]==2: a("s_mov_b32 s40, s34")
    elif CFG["rot"]==3: a("s_mov_b32 s40, s54")
    else: a("s_mov_b32 s40, 0")
    a("v_lshrrev_b32 v5, 3, v1\nv_and_b32 v6, 7, v1\nv_lshrrev_b32 v11, 1, v5\nv_xor_b32 v12, v6, v11")
    a("s_lshl_b32 s34, s58, 7\ns_lshl_b32 s33, s60, 5\ns_add_u32 s34, s34, s33\nv_add_u32 v10, s34, v5\nv_mul_u32_u24 v10, 896, v10")
    a("v_lshl_add_u32 v96, v12, 4, v10\nv_xor_b32 v12, 4, v12\nv_lshl_add_u32 v97, v12, 4, v10\nv_add_u32 v97, 7168, v97\nv_add_u32 v98, 14336, v96\nv_add_u32 v99, 14336, v97")
    a("s_lshl_b32 s35, s60, 4\nv_add_u32 v7, s35, v5\nv_mul_u32_u24 v10, 2688, v7\nv_and_b32 v11, 1, v11\nv_lshlrev_b32 v11, 2, v11\nv_xor_b32 v11, v6, v11\nv_lshl_add_u32 v3, v11, 4, v10")
    a("s_lshl_b32 s34, s54, 7\nv_add_u32 v3, s34, v3\ns_lshl_b32 s36, s31, 10\ns_lshl_b32 s37, s60, 12\ns_lshl_b32 s59, s60, 11")
    a("s_lshl_b32 s35, s31, 3\nv_add_u32 v7, s35, v5\nv_mul_u32_u24 v10, 896, v7\nv_lshl_add_u32 v4, v11, 4, v10\nv_add_u32 v4, s34, v4")
    a("v_lshlrev_b32 v8, 4, v1\nv_mov_b32 v9, 0\nv_lshlrev_b32 v13, 2, v1")
    a("s_waitcnt lgkmcnt(0)")
    a("s_cmp_eq_u32 s28, 0\ns_cselect_b32 s4, s4, s10\ns_cselect_b32 s5, s5, s11\ns_cselect_b32 s6, s6, s12\ns_cselect_b32 s7, s7, s13")
    srd(a,16,4,2048*448*2); srd(a,20,6,448*1344*2)
    vm=VM(a)
    def dma(st):
        b=(st%NB)*40960
        a(f"s_lshl_b32 s38, s40, 7\ns_mul_i32 s39, s40, 172032\ns_add_u32 s40, s40, 1")
        for i in range(4):
            a(f"s_add_u32 m0, s37, {b+i*1024}\ns_cmp_eq_u32 s40, 7")
            vm.issue(("d",st),f"buffer_load_dwordx4 v{96+i}, s[16:19], s38 offen lds")
        a("s_cselect_b32 s40, 0, s40")
        for pt in range(3):
            for i in range(2):
                a(f"s_add_u32 m0, s59, {b+16384+pt*8192+i*1024}\ns_add_u32 s38, s39, {pt*896+i*21504}")
                vm.issue(("d",st),"buffer_load_dwordx4 v3, s[20:23], s38 offen lds")
    a("s_cmp_ge_u32 s30, 28\ns_cbranch_scc1 L_A0\ns_cmp_lt_u32 s31, 4\ns_cbranch_scc1 L_A0")
    dma(0)
    a("L_A0:")
    srd(a,24,68,WS_SIZE); srd(a,44,66,256)
    a("s_and_b32 s55, s30, 1\ns_lshl_b32 s33, s32, 1\ns_add_u32 s55, s55, s33\ns_lshr_b32 s56, s30, 1")
    a("s_mul_i32 s33, s55, 7\ns_lshr_b32 s29, s33, 1\ns_lshl_b32 s29, s29, 9")
    a("s_lshl_b32 s34, s61, 3\ns_add_u32 s34, s34, s56\ns_and_b32 s34, s34, 15\ns_lshl_b32 s35, s60, 4\ns_add_u32 s34, s34, s35")
    a(f"s_lshl_b32 s70, s34, 15\ns_add_u32 s70, s70, s29\ns_add_u32 s70, s70, {KG}")
    a(f"s_lshl_b32 s71, s55, 6\ns_add_u32 s71, s71, s34\ns_lshl_b32 s71, s71, 11\ns_add_u32 s71, s71, {VF}")
    a(f"s_lshr_b32 s34, s33, 4\ns_add_u32 s35, s33, 6\ns_lshr_b32 s35, s35, 4\ns_sub_u32 s35, s35, s34\ns_lshl_b32 s34, s34, 11\ns_add_u32 s34, s34, {F1}\ns_lshl_b32 s35, s35, 11")
    a(f"v_and_b32 v10, 15, v1\nv_lshlrev_b32 v10, 7, v10\nv_bfe_u32 v11, v1, 4, 1\nv_mul_u32_u24 v11, s35, v11\nv_add3_u32 v158, v10, v11, s34")
    a(f"s_lshl_b32 s35, s56, 7\ns_add_u32 s34, s34, s35\ns_add_u32 s34, s34, {F2-F1}\ns_cmp_eq_u32 s31, 7\ns_cselect_b32 exec_hi, -1, 0\ns_mov_b32 exec_lo, 0\nv_add_u32 v158, s34, v11\ns_mov_b64 exec, -1")
    a(f"v_and_b32 v10, 7, v1\nv_min_u32 v10, 6, v10\nv_lshlrev_b32 v10, 11, v10\nv_bfe_u32 v11, v1, 3, 1\nv_lshl_add_u32 v10, v11, 14, v10\ns_lshr_b32 s34, s53, 1\ns_and_b32 s34, s34, 15\ns_lshl_b32 s34, s34, 7\ns_add_u32 s34, s34, {F1}\nv_add_u32 v0, s34, v10")
    a("s_or_b32 s50, s50, 1\ns_lshl_b32 s34, s2, 3\ns_add_u32 s34, s34, s31\ns_cmp_lg_u32 s34, 2040\ns_cbranch_scc1 L_NN")
    a("v_mov_b32 v6, s50\nv_mov_b32 v7, s51\ns_mov_b64 exec, 1\nbuffer_store_dwordx2 v[6:7], v9, s[44:47], 0 offen sc1\ns_mov_b64 exec, -1\nL_NN:")
    a("s_cmp_ge_u32 s30, 28\ns_cbranch_scc1 L_IDLE\ns_cmp_lt_u32 s31, 4\ns_cbranch_scc1 L_CMP")
    def get_nonce():
        L=lab("N"); D=lab("N")
        a(f"v_readfirstlane_b32 s50, v156\nv_readfirstlane_b32 s51, v157\ns_mov_b32 s52, {SPIN}\n{L}:\ns_cmp_lg_u32 s50, 0\ns_cbranch_scc1 {D}\ns_sub_u32 s52, s52, 1\ns_cmp_eq_u32 s52, 0\ns_cbranch_scc1 {D}")
        a(f"buffer_load_dwordx2 v[156:157], v9, s[44:47], 0 offen sc1\ns_waitcnt vmcnt(0)\nv_readfirstlane_b32 s50, v156\nv_readfirstlane_b32 s51, v157\ns_branch {L}\n{D}:")
    def wo_dma(k,half=0):
        p,j=divmod(k,7)
        a(f"s_add_u32 m0, s36, {(WOA if p else WOB)+j*8192-half*4096}\ns_mov_b32 s43, {j*64*896-half*32*896}")
        a(f"buffer_load_dwordx4 v{4+half}, s[{20-4*p}:{23-4*p}], s43 offen lds")
    dma(1)
    stamp(a,1)
    def inits():
        a(f"s_lshl_b32 s41, s58, 2\ns_add_u32 s41, s41, s60")
        a("s_lshl_b32 s34, s54, 4\ns_add_u32 s35, s34, 22\ns_add_u32 s34, s34, 6\ns_mul_i32 s34, s34, 9363\ns_lshr_b32 s34, s34, 16\ns_mul_i32 s35, s35, 9363\ns_lshr_b32 s35, s35, 16\ns_sub_u32 s35, s35, s34")
        a(f"s_lshl_b32 s38, s28, 6\ns_add_u32 s38, s38, s41\ns_lshl_b32 s38, s38, 4\ns_add_u32 s38, s38, s34\ns_lshl_b32 s38, s38, 11\ns_add_u32 s38, s38, {OF}")
        for r in range(4): a(f"v_mov_b32 v{16+r}, 0\nv_mov_b32 v{20+r}, 0x3f803f80")
        a(f"s_add_u32 s39, s38, 4096\ns_cmp_eq_u32 s35, 3\ns_cselect_b32 s39, s39, {WS_SIZE}")
        for k in range(6): vm.issue("cl",f"buffer_store_dwordx4 v[16:19], v8, s[24:27], s{38+k//4} offen offset:{(k%4)*1024} sc1")
        a("v_lshrrev_b32 v5, 4, v1\nv_lshlrev_b32 v5, 17, v5\nv_bfe_u32 v6, v1, 2, 2\nv_lshl_add_u32 v5, v6, 9, v5\nv_and_b32 v6, 1, v1\nv_lshl_add_u32 v5, v6, 6, v5\nv_bfe_u32 v6, v1, 1, 1\nv_lshl_add_u32 v5, v6, 8, v5")
        a(f"v_mul_u32_u24 v6, 7296, v1\ns_lshl_b32 s38, s34, 17\ns_lshl_b32 s39, s41, 11\ns_add_u32 s38, s38, s39\ns_add_u32 s38, s38, {VF+176}")
        a(f"s_mul_i32 s39, s41, {TBV}\ns_lshl_b32 s42, s54, 4\ns_add_u32 s39, s39, s42\ns_add_u32 s39, s39, {VT+7168}")
        a("s_cmp_eq_u32 s35, 3\ns_cselect_b32 s49, 0xffff, 0\ns_cmp_eq_u32 s28, 0\ns_cselect_b32 s38, s38, s39\ns_cselect_b32 s48, -1, 15\ns_cselect_b32 s49, s49, 0\ns_cselect_b64 s[42:43], -1, 0")
        a("v_cndmask_b32 v5, v6, v5, s[42:43]\ns_mov_b64 exec, s[48:49]")
        vm.issue("cl","buffer_store_dwordx4 v[20:23], v5, s[24:27], s38 offen sc1")
        a(f"s_mov_b64 exec, -1\ns_add_u32 s34, s34, s60\ns_lshl_b32 s38, s34, 12\ns_lshl_b32 s39, s58, 8\ns_add_u32 s38, s38, s39\ns_add_u32 s38, s38, {KVS}\ns_lshl_b32 s39, s34, 7\ns_add_u32 s39, s39, {CNT}")
        a(f"v_add_u32 v5, s38, v8\ns_mov_b64 exec, 0x10000\nv_mov_b32 v5, s39\ns_cmp_lt_u32 s60, s35\ns_cselect_b32 s38, 0, {WS_SIZE}\ns_cmp_eq_u32 s28, 0\ns_cselect_b32 s38, s38, {WS_SIZE}\ns_mov_b64 exec, 0x1ffff")
        vm.issue("cl","buffer_store_dwordx4 v[16:19], v5, s[24:27], s38 offen sc1")
        a("s_mov_b64 exec, -1")
        vm.issue("nonce","buffer_load_dwordx2 v[156:157], v9, s[44:47], 0 offen sc1")
    nxt=2
    for st in range(7):
        vm.wait(("d",st)); a("s_barrier")
        if st==0: stamp(a,2)
        while nxt<7 and nxt<=st+CFG["la"]+1 and (nxt-NB)<=st-1:
            dma(nxt); nxt+=1
        if st==CFG.get("ini",2): inits()
    stamp(a,3)
    srd(a,16,8,448*448*2); srd(a,20,14,448*448*2)
    a("v_add_u32 v5, 28672, v4")
    for k in range(CFG["woe"]):
        wo_dma(k)
        p,j=divmod(k,7)
        a(f"s_add_u32 m0, s36, {(WOA if p else WOB)+j*8192-4096}\nv_subrev_u32 v5, {28672-j*64*896}, v4" if j==0 else f"s_add_u32 m0, s36, {(WOA if p else WOB)+j*8192-4096}\ns_mov_b32 s43, {j*64*896-28672}")
        a(f"buffer_load_dwordx4 v{5 if j==0 else 4}, s[{20-4*p}:{23-4*p}], s43 offen lds")
    a("s_branch L_PE")
    a("L_CMP:\nbuffer_load_dwordx2 v[156:157], v9, s[44:47], 0 offen sc1")
    a("s_lshr_b32 s43, s31, 1\ns_lshl_b32 s41, s58, 1\ns_add_u32 s41, s41, s57\ns_lshl_b32 s41, s41, 1\ns_lshl_b32 s42, s54, 1\ns_add_u32 s42, s42, s43")
    a("v_and_b32 v5, 31, v1\nv_lshrrev_b32 v6, 5, v1\ns_lshl_b32 s34, s57, 6\nv_add_u32 v7, s34, v5")
    a("v_bfe_u32 v10, v7, 1, 3\nv_xor_b32 v10, v10, v6\nv_lshlrev_b32 v7, 7, v7")
    for ks in range(4):
        a(f"v_xor_b32 v11, {2*ks}, v10\nv_lshl_add_u32 v{160+ks}, v11, 4, v7\nv_add_u32 v{165+ks}, 81920, v{160+ks}")
    a("v_bfe_u32 v7, v1, 2, 2\nv_lshl_add_u32 v10, v6, 3, v7\nv_lshlrev_b32 v10, 7, v10")
    a("v_bfe_u32 v11, v1, 4, 1\nv_lshlrev_b32 v11, 5, v11\nv_and_b32 v12, 3, v1\nv_lshl_add_u32 v11, v12, 3, v11")
    a("s_lshl_b32 s34, s43, 6\nv_add_u32 v11, s34, v11\nv_lshrrev_b32 v7, 1, v7\nv_lshlrev_b32 v7, 6, v7\nv_xor_b32 v11, v11, v7")
    a("s_movk_i32 s34, 16384\nv_add3_u32 v164, v10, v11, s34\nv_add_u32 v169, 81920, v164")
    a(f"s_cmp_eq_u32 s28, 0\ns_cselect_b32 s34, 0, {f2u(1e-6)}")
    for r in range(16,80): a(f"v_mov_b32 v{r}, s34")
    a("s_lshl_b32 s34, s42, 5\nv_add_u32 v152, s34, v5\nv_mul_u32_u24 v10, 2341, v152\nv_lshrrev_b32 v10, 16, v10")
    a("v_mul_u32_u24 v11, 28, v10\nv_sub_u32 v11, v152, v11\nv_lshlrev_b32 v10, 17, v10")
    a("v_add_u32 v12, 21, v11\nv_add_u32 v15, 18, v11\nv_add_u32 v14, 7, v11\nv_lshrrev_b32 v12, 5, v12\nv_lshrrev_b32 v15, 5, v15\nv_lshrrev_b32 v14, 5, v14")
    a("v_add3_u32 v11, v11, v12, v15\nv_add_u32 v11, v11, v14\nv_lshl_add_u32 v10, v11, 4, v10\nv_lshl_add_u32 v153, v6, 9, v10")
    a("v_mul_u32_u24 v10, 7168, v6\nv_lshl_add_u32 v154, v152, 4, v10\nv_lshl_add_u32 v155, v6, 7, v154")
    srd(a,16,8,448*448*2); srd(a,20,14,448*448*2)
    def rdl(st,ks,fs):
        b=st%NB; xa=(160 if b<2 else 165)+ks; wa=164 if b<2 else 169; bo=(b&1)*40960
        X=112+20*fs; W=X+8
        w=lambda pt,u: f"ds_read_b64_tr_b16 {v(W+4*pt+2*u,2)}, v{wa} offset:{bo+pt*8192+ks*2048+u*512}"
        return [w(0,0),w(0,1),f"ds_read_b128 {v(X,4)}, v{xa} offset:{bo}",f"ds_read_b128 {v(X+4,4)}, v{xa} offset:{bo+4096}",w(1,0),w(1,1),w(2,0),w(2,1)]
    def swaps(P):
        a(f"s_nop 1\nv_permlane32_swap_b32 v{P}, v{P+2}\nv_permlane32_swap_b32 v{P+1}, v{P+3}\nv_permlane32_swap_b32 v{P+4}, v{P+6}\nv_permlane32_swap_b32 v{P+5}, v{P+7}")
    def mainloop(p):
        stamp(a,1)
        a("s_barrier")
        stamp(a,2)
        for x in rdl(0,0,0): a(x)
        fs=0
        for st in range(7):
            for ks in range(4):
                X=112+20*fs; W=X+8
                z="0" if (st==0 and ks==0) else None
                mm=[mfma(16,W,X),mfma(32,W,X+4),
                    mfma(48,W+4,X) if p==0 else mfma(48,X,W+4), mfma(64,W+4,X+4) if p==0 else mfma(64,X+4,W+4),
                    mfma(80,X,W+8,z),mfma(96,X+4,W+8,z)]
                if st==6 and ks==3: nx=[]
                elif ks<3: nx=rdl(st,ks+1,fs^1)
                else: nx=rdl(st+1,0,fs^1)
                a("s_waitcnt lgkmcnt(0)")
                if ks==3 and nx: a("s_barrier")
                a(mm[0])
                for i,x in enumerate(nx):
                    a(x)
                    if i in (1,3,5): a(mm[(i+1)//2])
                if not nx:
                    for x in mm[1:4]: a(x)
                a(mm[4]); a(mm[5])
                fs^=1
        stamp(a,3)
    ST="buffer_store_dwordx4 {}, v{}, s[24:27], s{} offen offset:{} sc1"
    a("s_cmp_eq_u32 s28, 0\ns_cbranch_scc0 L_PB")
    mainloop(0)
    a(f"s_mov_b32 s34, {f2u(CS)}\ns_lshl_b32 s35, s41, 15\ns_lshl_b32 s37, s42, 11\ns_add_u32 s35, s35, s37\ns_add_u32 s38, s35, {KG}\ns_lshl_b32 s37, s41, 11\ns_add_u32 s37, s37, {VF}\ns_nop 1")
    for t in range(2):
        T=112+64*t
        if t: a(f"s_add_u32 s35, s35, {TBK}\ns_add_u32 s38, s38, {TBK}")
        for j in range(8): a(f"v_cvt_pk_bf16_f32 v{T+8+j}, v{48+16*t+2*j}, v{49+16*t+2*j}")
        for r in range(16): a(f"v_mul_f32 v{16+16*t+r}, s34, v{16+16*t+r}")
        swaps(T+8); a(ST.format(v(T+8,4),8,38,0)); a(ST.format(v(T+12,4),8,38,1024))
        for j in range(8): a(f"v_cvt_pk_bf16_f32 v{T+j}, v{16+16*t+2*j}, v{17+16*t+2*j}")
        for j in range(8): a(f"v_cvt_pk_bf16_f32 v{T+16+j}, v{80+16*t+2*j}, v{81+16*t+2*j}")
        swaps(T); a(ST.format(v(T,4),8,35,0)); a(ST.format(v(T+4,4),8,35,1024))
        a(ST.format(v(T+16,4),153,37,2048*t)); a(ST.format(v(T+20,4),153,37,2048*t+1024))
    for k in range(4): a(f"v_mul_f32 v{170+k}, v{16+16*k}, v{16+16*k}")
    for r in range(1,16):
        for k in range(4): a(f"v_fmac_f32 v{170+k}, v{16+16*k+r}, v{16+16*k+r}")
    a("s_nop 1\nv_permlane32_swap_b32 v170, v171\nv_permlane32_swap_b32 v172, v173\nv_add_f32 v170, v170, v171\nv_add_f32 v172, v172, v173")
    for m in ("quad_perm:[1,0,3,2]","quad_perm:[2,3,0,1]","row_half_mirror","row_mirror","row_bcast:15"):
        rm="0xa" if "bcast" in m else "0xf"
        a(f"s_nop 0\nv_max_f32_dpp v170, v170, v170 {m} row_mask:{rm} bank_mask:0xf\ns_nop 0\nv_max_f32_dpp v172, v172, v172 {m} row_mask:{rm} bank_mask:0xf")
    a(f"s_lshl_b32 s37, s42, 6\ns_add_u32 s37, s37, s41\ns_lshl_b32 s37, s37, 2\ns_add_u32 s37, s37, {NRM}\nv_lshlrev_b32 v171, 2, v6\ns_mov_b32 exec_lo, 0x80000000\ns_mov_b32 exec_hi, 0x80000000")
    a("buffer_store_dword v170, v171, s[24:27], s37 offen sc1\nbuffer_store_dword v172, v171, s[24:27], s37 offen offset:3584 sc1\ns_mov_b64 exec, -1\ns_branch L_PE")
    a("L_PB:")
    mainloop(1)
    a(f"s_mov_b32 s34, {f2u(LOG2E)}\nv_mov_b32 v170, {f2u(-1e-6*LOG2E)}\nv_mov_b32 v171, {f2u(1e-6)}")
    a(f"s_mul_i32 s43, s41, {TBS}\ns_add_u32 s35, s43, {PKT}\ns_lshl_b32 s37, s42, 11\ns_add_u32 s37, s37, s43\ns_add_u32 s37, s37, {PQG}\ns_mul_i32 s39, s41, {TBV}\ns_add_u32 s39, s39, {VT}")
    def phi(base,tmp,dst):
        for r in range(16): a(f"v_fma_f32 v{tmp+r}, v{base+r}, s34, v170")
        for r in range(16): a(f"v_exp_f32 v{tmp+r}, v{tmp+r} clamp\nv_max_f32 v{base+r}, v{base+r}, v171")
        for r in range(16): a(f"v_add_f32 v{base+r}, v{base+r}, v{tmp+r}")
        for j in range(8): a(f"v_cvt_pk_bf16_f32 v{dst+j}, v{base+2*j}, v{base+1+2*j}")
    for t in range(2):
        phi(48+16*t,172,112+16*t)
        for j in range(8): a(f"v_cvt_pk_bf16_f32 v{120+16*t+j}, v{80+16*t+2*j}, v{81+16*t+2*j}")
        for m in range(2):
            a(ST.format(v(112+16*t+4*m,4),154,35,0)); a(ST.format(v(120+16*t+4*m,4),155,39,0))
            a("s_add_u32 s35, s35, 14336\ns_add_u32 s39, s39, 14592")
    for t in range(2):
        phi(16+16*t,172,80+8*t)
        swaps(80+8*t); a(ST.format(v(80+8*t,4),8,37,0)); a(ST.format(v(84+8*t,4),8,37,1024))
        a(f"s_add_u32 s37, s37, {TBS}")
    a("L_PE:")
    stamp(a,4)
    L=lab("F")
    a(f"s_lshl_b32 s34, s28, 3\ns_add_u32 s34, s34, s54\ns_lshl_b32 s34, s34, 4\ns_add_u32 s34, s34, s58\ns_lshl_b32 s34, s34, 7\ns_add_u32 s34, s34, {F1}")
    a("s_waitcnt vmcnt(0)"); get_nonce()
    a(f"s_barrier\ns_cmp_lg_u32 s31, 0\ns_cbranch_scc1 {L}")
    flag_store(a,34); a(f"{L}:")
    stamp(a,5)
    for k in range(CFG["woe"],14): wo_dma(k)
    a("s_branch L_ATT")
    a("L_IDLE:\nbuffer_load_dwordx2 v[156:157], v9, s[44:47], 0 offen sc1")
    a("s_sub_u32 s34, s30, 28\ns_lshl_b32 s34, s34, 3\ns_add_u32 s34, s34, s31\ns_mul_i32 s34, s34, 13312")
    srd(a,16,8,448*448*2); srd(a,20,14,448*448*2)
    for k in range(13):
        a(f"buffer_load_dwordx4 v[16:19], v8, s[16:19], s34 offen\nbuffer_load_dwordx4 v[20:23], v8, s[20:23], s34 offen\ns_add_u32 s34, s34, 1024")
    stamp(a,1); a("s_waitcnt vmcnt(0)"); get_nonce()
    stamp(a,2); stamp(a,3); stamp(a,4); stamp(a,5)
    a("L_ATT:")
    vm=VM(a)
    Q=[16,24]; O=[64,80]; S=[96,112]; P=[128,136]; R=192
    PL1="buffer_load_dwordx2 v[10:11], v158, s[24:27], 0 offen sc1"
    PC1="v_cmp_ne_u64 s[48:49], s[50:51], v[10:11]\ns_nop 0"
    PL3="buffer_load_dwordx2 v[6:7], v0, s[24:27], 0 offen sc1"
    PC3="v_cmp_ne_u64 s[48:49], s[50:51], v[6:7]\ns_nop 0"
    def ld(vm,kind,kt):
        kt0=kt
        base=R+16*(kt%4)+(0 if kind=="K" else 8)
        if CFG.get("nokv") and kt>=4: kt=kt%4
        a(f"s_xor_b32 s42, s70, {kt*TBK}" if kind=="K" else f"s_xor_b32 s42, s71, {kt*2048}")
        kt=kt0
        for m in range(2):
            vm.issue((kind,kt),f"buffer_load_dwordx4 {v(base+4*m,4)}, v8, s[24:27], s42 offen offset:{m*1024} {CFG.get('kvf','sc1')}")
    def W(vmx,tag):
        if vmx: vmx.wait(tag)
        else: a("s_waitcnt vmcnt(0)")
    def I(vmx,tag,txt):
        if vmx: vmx.issue(tag,txt,True)
        else: a(txt)
    def i1_a(vmx):
        a("s_mul_i32 s33, s55, 7\ns_lshr_b32 s34, s33, 4\ns_add_u32 s34, s34, 448")
        a("v_and_b32 v3, 19, v1\nv_bfe_u32 v2, v1, 2, 1\nv_lshl_add_u32 v3, v2, 3, v3\nv_bfe_u32 v2, v1, 3, 1\nv_lshl_add_u32 v3, v2, 2, v3")
        a("v_lshrrev_b32 v5, 5, v1\nv_mul_u32_u24 v6, 7168, v5\nv_lshl_add_u32 v3, v3, 4, v6\nv_lshl_add_u32 v6, v5, 7, v6")
        a("v_and_b32 v5, 31, v1\nv_add_u32 v7, 20, v5\nv_lshrrev_b32 v7, 5, v7\nv_sub_u32 v2, v5, v7\nv_lshrrev_b32 v7, 4, v5\nv_sub_u32 v2, v2, v7\nv_add_u32 v7, 4, v5\nv_lshrrev_b32 v7, 5, v7\nv_sub_u32 v2, v2, v7")
        a("s_lshl_b32 s33, s33, 2\nv_add_u32 v2, s33, v2\nv_and_b32 v5, 11, v5\nv_cmp_eq_u32 s[48:49], 11, v5\nv_mov_b32 v7, s34\ns_nop 0\nv_cndmask_b32 v2, v2, v7, s[48:49]")
        a("v_lshl_add_u32 v2, v2, 4, v6")
    def i1_b(vmx):
        a(f"s_mul_i32 s34, s56, {4*TBS}\ns_lshr_b32 s35, s29, 2\ns_add_u32 s34, s34, s35\ns_add_u32 s34, s34, {PKT}\ns_mul_i32 s35, s56, {4*TBV}\ns_add_u32 s35, s35, {VT}")
        for i in range(8):
            I(vmx,"pay",f"buffer_load_dwordx4 {v(32+4*i,4)}, v3, s[24:27], s34 offen sc1")
            I(vmx,"pay",f"buffer_load_dwordx4 {v(144+4*i,4)}, v2, s[24:27], s35 offen sc1")
            if i<7: a("s_add_u32 s34, s34, 14336\ns_add_u32 s35, s35, 14592")
    def i1_c(vmx):
        W(vmx,"pay")
        for i in range(8): a(mfma(176,32+4*i,144+4*i,"0" if i==0 else None))
    def i1_d(vmx):
        a(f"s_lshl_b32 s34, s55, 12\ns_add_u32 s34, s34, {KVS}")
        for r in range(16): I(vmx,"at",f"buffer_atomic_add_f32 v{176+r}, v13, s[24:27], s34 offen offset:{r*256}")
    def i1_e(vmx):
        W(vmx,"at")
        a(f"s_lshl_b32 s34, s55, 7\ns_add_u32 s34, s34, {CNT}\nv_mov_b32 v14, 1\ns_mov_b64 exec, 1")
        I(vmx,"cn","buffer_atomic_add v14, v9, s[24:27], s34 offen"); a("s_mov_b64 exec, -1")
    PL4="buffer_load_dword v14, v9, s[24:27], s33 offen sc1"
    def i2_a(vmx):
        a(f"s_lshl_b32 s33, s55, 7\ns_add_u32 s33, s33, {CNT}"); I(vmx,"p4",PL4)
    def i2_b(vmx):
        W(vmx,"p4"); spin(a,"v_cmp_gt_u32 s[48:49], 16, v14\ns_nop 0",PL4)
        a(f"s_lshl_b32 s34, s55, 12\ns_add_u32 s34, s34, {KVS}\ns_lshl_b32 s35, s56, 2\ns_add_u32 s35, s35, s60\ns_mul_i32 s35, s35, {TBS}\ns_add_u32 s35, s35, s29\ns_add_u32 s35, s35, {PQG}")
        for r in range(16): I(vmx,"kv",f"buffer_load_dword v{144+r}, v13, s[24:27], s34 offen offset:{r*256} sc1")
        for m in range(2): I(vmx,"kv",f"buffer_load_dwordx4 {v(168+4*m,4)}, v8, s[24:27], s35 offen offset:{m*1024} sc1")
    def qmask(b):
        a(f"v_cndmask_b32 v{b}, v{b}, 0, s[38:39]\nv_cndmask_b32 v{b+1}, v{b+1}, 0, s[38:39]\nv_cndmask_b32 v{b+6}, v{b+6}, 0, s[40:41]\nv_cndmask_b32 v{b+7}, v{b+7}, 0, s[40:41]")
    def i2_c(vmx):
        W(vmx,"kv")
        for j in range(8): a(f"v_cvt_pk_bf16_f32 v{160+j}, v{144+2*j}, v{145+2*j}")
        qmask(168); a("s_nop 1")
        a(mfma(176,160,168,"0")); a(mfma(176,164,172))
    def i2_d(vmx):
        a(f"v_add_f32 v15, {f2u(1e-6)}, v183\nv_rcp_f32 v15, v15\ns_lshl_b32 s34, s56, 2\ns_add_u32 s34, s34, s60\ns_lshl_b32 s34, s34, 4\ns_add_u32 s34, s34, s55\ns_lshl_b32 s34, s34, 11\ns_add_u32 s34, s34, {OF+2*MB}")
        for r in range(16): a(f"v_mul_f32 v{176+r}, v{176+r}, v15" if r%8!=7 else f"v_mov_b32 v{176+r}, {TAG}")
        for j in range(8): a(f"v_cvt_pk_bf16_f32 v{160+j}, v{176+2*j}, v{177+2*j}")
        for m in range(2): I(vmx,"ob",f"buffer_store_dwordx4 {v(160+4*m,4)}, v8, s[24:27], s34 offen offset:{m*1024} sc1")
    def special(f,vmx):
        L=lab("S"); a(f"s_cbranch_vccz {L}"); f(vmx); a(f"{L}:")
    def ofr(p,F):
        return "\n".join(f"buffer_load_dwordx4 {v(F+4*f,4)}, v8, s[24:27], s{62+f//4} offen offset:{(f%4)*1024} sc1" for f in range(8))
    def ofr_addr(p):
        a(f"s_lshl_b32 s62, s53, 1\ns_add_u32 s62, s62, s57\ns_lshl_b32 s62, s62, 2\ns_lshr_b32 s63, s31, 1\ns_add_u32 s62, s62, s63\ns_lshl_b32 s62, s62, 13\ns_add_u32 s62, s62, {OF+p*2*MB}\ns_add_u32 s63, s62, 4096")
    a(PL1)
    a("s_cmp_eq_u32 s31, 7\ns_cselect_b64 vcc, -1, 0")
    special(i1_a,vm)
    a(f"s_mul_i32 s33, s55, 7\ns_lshr_b32 s34, s33, 3\ns_add_u32 s35, s33, 6\ns_lshr_b32 s35, s35, 3\ns_lshl_b32 s34, s34, 8\ns_lshl_b32 s35, s35, 8")
    a(f"s_add_u32 s34, s34, {NRM}\ns_add_u32 s35, s35, {NRM}\ns_lshl_b32 s37, s56, 4\nv_and_b32 v12, 12, v13\nv_add_u32 v12, s37, v12")
    a(f"s_lshl_b32 s37, s56, 2\ns_lshl_b32 s38, s61, 1\ns_add_u32 s37, s37, s38\ns_lshl_b32 s37, s37, 15\ns_add_u32 s37, s37, s29\ns_add_u32 s38, s37, {TBK}")
    a("s_waitcnt vmcnt(0)"); spin(a,PC1,PL1)
    stamp(a,6)
    vm.issue("n","buffer_load_dword v10, v13, s[24:27], s34 offen offset:3584 sc1")
    vm.issue("n","buffer_load_dword v11, v13, s[24:27], s35 offen offset:3584 sc1")
    vm.issue("n","buffer_load_dword v14, v12, s[24:27], s34 offen sc1")
    vm.issue("n","buffer_load_dword v15, v12, s[24:27], s35 offen sc1")
    for qb in range(2):
        for m in range(2):
            vm.issue("q",f"buffer_load_dwordx4 {v(Q[qb]+4*m,4)}, v8, s[24:27], s{37+qb} offen offset:{m*1024} sc1")
    ld(vm,"K",0)
    if CFG.get("pb",1): a("s_barrier")
    ld(vm,"K",1); ld(vm,"V",0)
    special(i1_b,vm)
    for kind,kt in (("V",1),("K",2),("K",3)): ld(vm,kind,kt)
    if CFG["stop"]=="P":
        a("s_waitcnt vmcnt(0)"); stamp_out(a,7); a("L_END:\ns_endpgm"); return a
    a("s_bitcmp1_b32 s55, 0\ns_cselect_b32 s38, -1, 0\ns_mov_b32 s39, 0\ns_mov_b32 s40, 0\ns_cselect_b32 s41, 0, -1")
    vm.wait("n")
    a("v_add_f32 v10, v10, v11\nv_add_f32 v14, v14, v15\ns_nop 1")
    for m in ("quad_perm:[1,0,3,2]","quad_perm:[2,3,0,1]","row_half_mirror","row_mirror"):
        a(f"v_max_f32_dpp v10, v10, v10 {m} row_mask:0xf bank_mask:0xf\ns_nop 0")
        if "quad" in m: a(f"v_max_f32_dpp v14, v14, v14 {m} row_mask:0xf bank_mask:0xf")
        else: a("s_nop 0")
    a("v_readlane_b32 s32, v10, 0\nv_readlane_b32 s33, v10, 16\nv_readlane_b32 s34, v10, 32\nv_readlane_b32 s35, v10, 48\ns_nop 1")
    a("s_max_u32 s32, s32, s33\ns_max_u32 s34, s34, s35\ns_max_u32 s32, s32, s34")
    a("v_mul_f32 v14, s32, v14\ns_nop 0\nv_readfirstlane_b32 s32, v14\ns_nop 1")
    vm.wait("q"); qmask(Q[0]); qmask(Q[1])
    a(f"s_cmp_le_u32 s32, {f2u(TH*TH)}\ns_cbranch_scc0 L_SLOW")
    def Kf(kt,m): return R+16*(kt%4)+4*m
    def Vf(kt,m): return R+16*(kt%4)+8+4*m
    NT=32
    def qk(i,m):
        kt,qb=divmod(i,2)
        if m==0 and qb==0: vm.wait(("K",kt))
        a(mfma(S[qb],Kf(kt,m),Q[qb]+4*m,"0" if m==0 else None))
    def pv(i,m):
        kt,qb=divmod(i,2)
        if m==0 and qb==0: vm.wait(("V",kt))
        a(mfma(O[qb],Vf(kt,m),P[qb]+4*m,"0" if (kt==0 and m==0) else None))
    def e(i,r): qb=i%2; return f"v_exp_f32 v{S[qb]+r}, v{S[qb]+r}"
    def c(i,j): qb=i%2; return f"v_cvt_pk_bf16_f32 v{P[qb]+j}, v{S[qb]+2*j}, v{S[qb]+2*j+1}"
    ins=dict(zip(CFG['ins'],(i1_c,i1_d,i1_e,i2_a,i2_b,i2_c,i2_d))); t2=CFG['ins'][3]
    if CFG.get("noB"): ins={}
    stamp(a,7)
    a("s_setprio 3")
    qk(0,0); qk(0,1)
    a("s_nop 11")
    for i in range(NT):
        seq=[e(i,0),e(i,1),e(i,2),c(i,0),e(i,3),e(i,4),c(i,1),e(i,5),e(i,6),c(i,2),e(i,7),e(i,8),c(i,3),e(i,9),e(i,10),c(i,4),e(i,11),e(i,12),c(i,5),e(i,13),e(i,14),c(i,6),e(i,15)]
        if i in CFG["prio"]: a(f"s_setprio {2-CFG['prio'].index(i)}")
        a(seq[0])
        if i>0: a(c(i-1,7))
        if i+1<NT: qk(i+1,0)
        for x in seq[1:5]: a(x)
        if i+1<NT: qk(i+1,1)
        for x in seq[5:11]: a(x)
        if i>0: pv(i-1,0)
        if i==t2:
            vm.drop_sp(); a("s_cmp_lt_u32 s31, 4\ns_cselect_b64 vcc, -1, 0")
        if i in ins: special(ins[i],vm)
        j=i//2
        if i%2==0:
            if j+2<16: ld(vm,"V",j+2)
        else:
            if j+4<16: ld(vm,"K",j+4)
        if i==24: vm.issue("p3",PL3)
        if i==30:
            vm.drop_sp(); vm.wait("p3"); spin(a,PC3,PL3)
        for x in seq[11:17]: a(x)
        if i>0: pv(i-1,1)
        for x in seq[17:23]: a(x)
    a("s_nop 0"); a(c(NT-1,7)); a("s_nop 1")
    pv(NT-1,0); pv(NT-1,1)
    a("L_TAIL:")
    stamp(a,8)
    def red_write(B,rank,dmul,dadd,base):
        for g in range(4):
            L=lab("R"); E=lab("R")
            a(f"s_sub_u32 s34, s{rank}, {g+1}\ns_and_b32 s34, s34, 3\ns_cmp_eq_u32 s34, 3\ns_cbranch_scc1 {L}")
            a(f"s_lshl_b32 s34, s34, 11\ns_mul_i32 s35, s{dadd}, 6144\ns_add_u32 s34, s34, s35\ns_add_u32 s34, s34, {base+g*dmul*6144}\nv_add_u32 v10, s34, v8")
            a(f"ds_write_b128 v10, {v(B+8*g,4)}\nds_write_b128 v10, {v(B+8*g+4,4)} offset:1024\ns_branch {E}\n{L}:")
            for r in range(8): a(f"v_mov_b32 v{96+r}, v{B+8*g+r}")
            a(f"{E}:")
    def red_read(base):
        a(f"s_mul_i32 s34, s31, 6144\ns_add_u32 s34, s34, {base}\nv_add_u32 v10, s34, v8")
        for q in range(6): a(f"ds_read_b128 {v(104+4*q,4)}, v10 offset:{q*1024}")
        a("s_waitcnt lgkmcnt(2)")
        for r in range(8): a(f"v_add_f32 v{96+r}, v{96+r}, v{104+r}")
        a("s_waitcnt lgkmcnt(0)")
        for r in range(8): a(f"v_add_f32 v{112+r}, v{112+r}, v{120+r}")
        for r in range(8): a(f"v_add_f32 v{96+r}, v{96+r}, v{112+r}")
    a("s_lshl_b32 s33, s61, 2\ns_lshr_b32 s32, s31, 1")
    a("v_lshrrev_b32 v6, 5, v1\nv_bfe_u32 v7, v1, 2, 2\nv_lshl_add_u32 v11, v6, 2, v7\nv_min_u32 v7, 2, v7\nv_mad_u32_u24 v12, v6, 3, v7\nv_add_u32 v12, 8, v12")
    a("v_bfe_u32 v5, v1, 4, 1\nv_lshlrev_b32 v5, 5, v5\nv_and_b32 v7, 3, v1\nv_lshl_add_u32 v5, v7, 3, v5\ns_mul_i32 s34, s32, 14336\ns_add_u32 s34, s34, %d\nv_add_u32 v5, s34, v5"%WOB)
    for m in range(2):
        for u in range(2):
            d=240+2*m+u
            if m: a(f"v_add_u32 v{11+u}, 14, v{11+u}")
            a(f"v_bfe_u32 v7, v{11+u}, 1, 1\nv_lshl_add_u32 v{d}, v{11+u}, 7, v5\nv_lshl_add_u32 v{d}, v7, 6, v{d}\nv_xor_b32 v{d+4}, 64, v{d}")
    red_write(64,60,1,33,EX)
    a("s_lshl_b32 s34, s53, 1\ns_add_u32 s34, s34, s57\ns_lshl_b32 s34, s34, 5\nv_and_b32 v5, 31, v1\nv_add_u32 v5, s34, v5\nv_mul_u32_u24 v5, 1792, v5\nv_lshl_add_u32 v248, v6, 4, v5")
    a("s_lshl_b32 s70, s54, 7\ns_lshl_b32 s34, s32, 5\ns_add_u32 s70, s70, s34\ns_add_u32 s71, s70, 896")
    a("s_lshl_b32 s34, s56, 2\ns_lshl_b32 s35, s61, 1\ns_add_u32 s34, s34, s35\ns_lshr_b32 s35, s60, 1\ns_add_u32 s34, s34, s35\ns_lshl_b32 s34, s34, 4\ns_add_u32 s34, s34, s55")
    a(f"s_lshl_b32 s34, s34, 1\ns_and_b32 s35, s60, 1\ns_add_u32 s34, s34, s35\ns_lshl_b32 s34, s34, 10\ns_add_u32 s37, s34, {OF}")
    srd(a,44,64,2048*896*2)
    ofr_addr(1)
    for x in ofr(1,144).split("\n"): vm.issue("of",x)
    a("s_waitcnt lgkmcnt(0)\ns_barrier")
    red_read(EX)
    a("v_rcp_f32 v11, v103\ns_nop 0")
    for r in range(7): a(f"v_mul_f32 v{96+r}, v{96+r}, v11")
    a(f"v_mov_b32 v103, {TAG}")
    for j in range(4): a(f"v_cvt_pk_bf16_f32 v{104+j}, v{96+2*j}, v{97+2*j}")
    vm.issue("oa","buffer_store_dwordx4 v[104:107], v8, s[24:27], s37 offen sc1")
    stamp(a,9)
    a("s_cmp_ge_u32 s30, 28\ns_cbranch_scc1 L_FIN")
    if CFG["stop"]=="ATT": a("s_branch L_FIN")
    def tagcmp(F):
        return (f"v_min3_u32 v11, v{F+3}, v{F+7}, v{F+11}\nv_min3_u32 v12, v{F+15}, v{F+19}, v{F+23}\nv_min3_u32 v11, v11, v{F+27}, v{F+31}\nv_min_u32 v11, v11, v12\n"
                f"v_cmp_gt_u32 s[48:49], s42, v11\ns_nop 0")
    def oproj(F):
        def rd(f,fs):
            hl,m=divmod(f,2)
            for nt in range(2):
                for u in range(2): a(f"ds_read_b64_tr_b16 {v(224+8*fs+4*nt+2*u,2)}, v{240+4*nt+2*m+u} offset:{hl*3584}")
        rd(0,0)
        return rd
    def oproj2(F,rd):
        for f in range(8):
            fs=f&1
            if f<7: rd(f+1,fs^1); a("s_waitcnt lgkmcnt(4)")
            else: a("s_waitcnt lgkmcnt(0)")
            a(mfma(32,224+8*fs,F+4*f,"0" if f==0 else None)); a(mfma(48,228+8*fs,F+4*f,"0" if f==0 else None))
    def ostore(so):
        for j in range(4): a(f"v_cvt_pk_bf16_f32 v{104+j}, v{96+2*j}, v{97+2*j}")
        a(f"s_nop 1\nv_permlane32_swap_b32 v104, v106\nv_permlane32_swap_b32 v105, v107\nbuffer_store_dwordx4 v[104:107], v248, s[44:47], s{so} offen")
    a(f"s_mov_b32 s42, {TAG}")
    rd=oproj(144)
    vm.wait("of"); spin(a,tagcmp(144),ofr(1,144))
    oproj2(144,rd)
    ofr_addr(0)
    for r in range(8): a(f"v_subrev_u32 v{240+r}, {WOB-WOA}, v{240+r}")
    a("s_barrier")
    red_write(32,32,2,57,EX)
    a(ofr(0,192))
    a("s_waitcnt lgkmcnt(0)\ns_barrier")
    red_read(EX); ostore(71)
    stamp(a,10)
    rd=oproj(192)
    a("s_waitcnt vmcnt(1)"); spin(a,tagcmp(192),ofr(0,192))
    stamp(a,11)
    oproj2(192,rd)
    a("s_nop 11")
    red_write(32,32,2,57,WOB)
    a("s_waitcnt lgkmcnt(0)\ns_barrier")
    red_read(WOB); ostore(70)
    a("L_FIN:")
    stamp_out(a,12)
    a("L_END:\ns_endpgm")
    a("L_SLOW:\ns_waitcnt vmcnt(0)")
    a("s_cmp_eq_u32 s31, 7\ns_cbranch_scc0 L_S1")
    i1_c(None); a("s_nop 15"); i1_d(None); i1_e(None)
    a("L_S1:\nv_mov_b32 v10, 0xff800000\nv_mov_b32 v11, 0xff800000\ns_mov_b32 s43, 0\nL_S2:\ns_lshl_b32 s42, s43, 15\ns_xor_b32 s42, s42, s70")
    a(f"buffer_load_dwordx4 v[192:195], v8, s[24:27], s42 offen sc1\nbuffer_load_dwordx4 v[196:199], v8, s[24:27], s42 offen offset:1024 sc1\ns_waitcnt vmcnt(0)")
    for qb in range(2):
        a(mfma(S[qb],192,Q[qb],"0")); a(mfma(S[qb],196,Q[qb]+4))
    a("s_nop 15")
    for qb in range(2):
        for r in range(0,16,2): a(f"v_max3_f32 v{10+qb}, v{10+qb}, v{S[qb]+r}, v{S[qb]+r+1}")
    a("s_add_u32 s43, s43, 1\ns_cmp_lg_u32 s43, 16\ns_cbranch_scc1 L_S2")
    a("v_mov_b32 v14, v10\nv_mov_b32 v15, v11\ns_nop 1\nv_permlane32_swap_b32 v10, v14\nv_permlane32_swap_b32 v11, v15")
    a("v_max_f32 v10, v10, v14\nv_max_f32 v11, v11, v15")
    a(f"s_barrier\ns_lshl_b32 s34, s31, 9\ns_add_u32 s34, s34, {EX}\nv_add_u32 v12, s34, v13\nds_write_b32 v12, v10\nds_write_b32 v12, v11 offset:256")
    a(f"s_lshl_b32 s34, s61, 11\ns_add_u32 s34, s34, {EX}\nv_add_u32 v12, s34, v13\ns_waitcnt lgkmcnt(0)\ns_barrier")
    for k in range(4): a(f"ds_read_b32 v{192+k}, v12 offset:{k*512}\nds_read_b32 v{196+k}, v12 offset:{k*512+256}")
    a("s_waitcnt lgkmcnt(0)\ns_barrier")
    for qb in range(2):
        b=192+4*qb
        a(f"v_max3_f32 v{b}, v{b}, v{b+1}, v{b+2}\nv_max_f32 v{10+qb}, v{b}, v{b+3}")
    for r in range(64,96): a(f"v_mov_b32 v{r}, 0")
    a("s_mov_b32 s43, 0\nL_S3:\ns_lshl_b32 s42, s43, 15\ns_xor_b32 s42, s42, s70\ns_lshl_b32 s37, s43, 11\ns_xor_b32 s37, s37, s71")
    a(f"buffer_load_dwordx4 v[192:195], v8, s[24:27], s42 offen sc1\nbuffer_load_dwordx4 v[196:199], v8, s[24:27], s42 offen offset:1024 sc1")
    a(f"buffer_load_dwordx4 v[200:203], v8, s[24:27], s37 offen sc1\nbuffer_load_dwordx4 v[204:207], v8, s[24:27], s37 offen offset:1024 sc1\ns_waitcnt vmcnt(0)")
    for qb in range(2):
        a(mfma(S[qb],192,Q[qb],"0")); a(mfma(S[qb],196,Q[qb]+4))
    a("s_nop 15")
    for qb in range(2):
        for r in range(16): a(f"v_sub_f32 v{S[qb]+r}, v{S[qb]+r}, v{10+qb}")
        for r in range(16): a(e(qb,r))
        a("s_nop 0")
        for j in range(8): a(c(qb,j))
    a("s_nop 1")
    for qb in range(2):
        a(mfma(O[qb],200,P[qb])); a(mfma(O[qb],204,P[qb]+4))
    a("s_add_u32 s43, s43, 1\ns_cmp_lg_u32 s43, 16\ns_cbranch_scc1 L_S3")
    a("s_cmp_lt_u32 s31, 4\ns_cbranch_scc0 L_S4")
    i2_a(None); i2_b(None); i2_c(None); a("s_nop 15"); i2_d(None)
    a("L_S4:"); a(PL3); a("s_waitcnt vmcnt(0)"); spin(a,PC3,PL3); a("s_branch L_TAIL")
    return a
def emit(path):
    uid[0]=0
    a=gen(); N="concat_heads__softmax_full_mha__linear_attn_block__prompt_kernel"
    for e_ in check(a.lines,"fused"): print("HAZARD",e_)
    hdr="; generated by work/gen/fused.py (hand-written generator)\n; @launch grid=(256,1,1) block=(512,1,1) lds=163840\n"
    kd=f""".section .rodata,"a"
.p2align 6
.amdhsa_kernel {N}
  .amdhsa_next_free_vgpr 256
  .amdhsa_next_free_sgpr 102
  .amdhsa_accum_offset 256
  .amdhsa_group_segment_fixed_size 0
  .amdhsa_kernarg_size 72
  .amdhsa_user_sgpr_count 2
  .amdhsa_user_sgpr_kernarg_segment_ptr 1
  .amdhsa_system_sgpr_workgroup_id_x 1
.end_amdhsa_kernel
"""
    open(path,"w").write(hdr+'.amdgcn_target "amdgcn-amd-amdhsa--gfx950"\n.text\n'+a.text()+kd)
if __name__=="__main__":
    if "--instr" in sys.argv: INSTR=True
    for x in sys.argv[2:]:
        if "=" in x:
            k,val=x.split("="); CFG[k]=eval(val)
    emit(sys.argv[1])
```

```python
import struct, sys
from asmlib import *
def f2u(x): return struct.unpack("<I",struct.pack("<f",x))[0]
MB=1<<20
TBS=28672
QG=0; KG=2*MB; VF=4*MB; PQG=6*MB; PKT=8*MB; VT=10*MB; OF=12*MB
TBV=4*456*16
KVS=16*MB
CNT=KVS+65536
NRM=16*MB+131072
FL=17*MB
F1=FL; F2=FL+128*128; F6=FL+256*128; F7=FL+512*128
TBK=32768
WS_SIZE=18*MB
EX=0; WOA=49152; WOB=106496
TAG=0x00800000
CFG=dict(ins=(12,17,23,24),rot=1,la=1,fill=(4,6),f6=9,f7=16,cpf=1,p3=22,prio=(16,26,30),stop=None,sleep=4,wo0=4,late=0,ie=6,pro=1,fs=7,pw=3,psl2=4,pf='sc0 sc1',sf='sc0 sc1',p3f='sc1',p4f='sc1',off='sc1',osf='sc1')
LOG2E=1.4426950408889634
CS=28**-0.5*LOG2E
TH=60.0
SPIN=20000
MF="v_mfma_f32_32x32x16_bf16"
INSTR=False
STAMP=32*MB
def mfma(d,a,b,c=None):
    return f"{MF} {v(d,16)}, {v(a,4)}, {v(b,4)}, {v(d,16) if c is None else c}"
def srd(a,d,base,size):
    a(f"s_mov_b32 s{d}, s{base}\ns_and_b32 s{d+1}, s{base+1}, 0xffff\ns_mov_b32 s{d+2}, {size}\ns_mov_b32 s{d+3}, 0x20000")
class VM:
    def __init__(self,a): self.a=a; self.q=[]; self.done=0
    def issue(self,tag,txt,sp=False): self.a(txt); self.q.append((tag,sp))
    def wait(self,tag,extra=""):
        idx=max(i for i,t in enumerate(self.q) if t[0]==tag)
        sp=self.q[idx][1]
        ns=min(63,len(self.q)-1-idx); nb=min(63,sum(1 for t in self.q[idx+1:] if not t[1]))
        if sp:
            self.a(f"s_waitcnt vmcnt({ns}) {extra}"); return
        if idx<self.done:
            if extra: self.a(f"s_waitcnt {extra}")
            return
        self.done=idx+1
        if ns==nb: self.a(f"s_waitcnt vmcnt({nb}) {extra}")
        else:
            L=lab("W"); self.a(f"s_waitcnt vmcnt({ns}) {extra}\ns_cbranch_vccnz {L}\ns_waitcnt vmcnt({nb})\n{L}:")
    def drop_sp(self):
        nd=sum(1 for t in self.q[:self.done] if not t[1])
        self.q=[t for t in self.q if not t[1]]; self.done=nd
NSTAMP=12
def stamp(a,i,real=False,pst=False):
    if not INSTR: return
    if CFG.get("pst") and 2<i<12 and not pst: return
    if pst and not CFG.get("pst"): return
    a(f"s_memtime s[{72+2*i}:{73+2*i}]")
    if real: a(f"s_memrealtime s[{98+2*(0 if i==0 else 1)}:{99+2*(0 if i==0 else 1)}]")
    a("s_waitcnt lgkmcnt(0)")
def stamp_out(a,n):
    if not INSTR: return
    a("s_waitcnt vmcnt(0)")
    stamp(a,n,True)
    a("s_mov_b64 exec, 1")
    a(f"s_lshl_b32 s62, s2, 3\ns_add_u32 s62, s62, s31\ns_lshl_b32 s62, s62, 7\ns_add_u32 s62, s62, {STAMP}\ns_mov_b32 s26, {64*MB}\nv_mov_b32 v0, 0")
    for i in range(n+1):
        a(f"v_mov_b32 v1, s{72+2*i}\nbuffer_store_dword v1, v0, s[24:27], s62 offen offset:{4*i}")
    a("v_mov_b32 v1, s98\nbuffer_store_dword v1, v0, s[24:27], s62 offen offset:64\nv_mov_b32 v1, s100\nbuffer_store_dword v1, v0, s[24:27], s62 offen offset:68")
uid=[0]
def lab(p):
    uid[0]+=1; return f"L{p}{uid[0]}"
def spin(a, cmp, loads):
    L=lab("P"); D=lab("D")
    a(f"s_mov_b32 s52, {SPIN}\n{L}:\n{cmp}\ns_cmp_eq_u64 s[48:49], 0\ns_cbranch_scc1 {D}\ns_sub_u32 s52, s52, 1\ns_cbranch_scc1 {D}")
    a(f"s_sleep {CFG['sleep']}\n{loads}\ns_waitcnt vmcnt(0)\ns_branch {L}\n{D}:")
def flag_store(a, soff, vm=None, t=14):
    a(f"v_mov_b32 v{t}, s50\nv_mov_b32 v{t+1}, s51\ns_mov_b64 exec, 1")
    x=f"buffer_store_dwordx2 v[{t}:{t+1}], v9, s[24:27], s{soff} offen {CFG['sf']}"
    if vm: vm.issue("flag",x)
    else: a(x)
    a("s_mov_b64 exec, -1")

def gen():
    a=Asm(); N="concat_heads__softmax_full_mha__linear_attn_block__prompt_kernel"
    WB=114688; GR=[[i] for i in range(7)]+[[7+2*i,8+2*i] for i in range(7)]
    a(f".globl {N}\n.p2align 8\n.type {N},@function\n{N}:")
    a("s_cmp_ge_u32 s2, 256\ns_cbranch_scc1 L_END")
    a("s_load_dwordx8 s[4:11], s[0:1], 0\ns_load_dwordx4 s[12:15], s[0:1], 32\ns_load_dwordx4 s[64:67], s[0:1], 48\ns_load_dwordx2 s[68:69], s[0:1], 64\ns_memrealtime s[50:51]")
    stamp(a,0,True)
    a("v_lshrrev_b32 v2, 6, v0\nv_and_b32 v1, 63, v0\ns_and_b32 s32, s2, 7\ns_lshr_b32 s30, s2, 3")
    a("v_readfirstlane_b32 s31, v2")
    a("s_mul_i32 s34, s30, 37\ns_lshr_b32 s34, s34, 8")
    a("s_mul_i32 s35, s34, 7\ns_sub_u32 s54, s30, s35")
    a("s_lshl_b32 s33, s32, 2\ns_add_u32 s53, s33, s34")
    a("s_and_b32 s28, s32, 1\ns_lshr_b32 s33, s32, 1\ns_lshl_b32 s33, s33, 2\ns_add_u32 s58, s33, s34")
    a("s_and_b32 s60, s31, 3\ns_lshr_b32 s61, s31, 2\ns_and_b32 s57, s31, 1")
    if CFG["rot"]==1:
        a("s_lshl_b32 s35, s34, 1\ns_add_u32 s35, s35, s54\ns_cmp_ge_u32 s35, 7\ns_cselect_b32 s36, 7, 0\ns_sub_u32 s35, s35, s36\ns_cmp_ge_u32 s35, 7\ns_cselect_b32 s36, 7, 0\ns_sub_u32 s40, s35, s36")
    elif CFG["rot"]==2: a("s_mov_b32 s40, s34")
    elif CFG["rot"]==3: a("s_mov_b32 s40, s54")
    else: a("s_mov_b32 s40, 0")
    a("v_lshrrev_b32 v5, 3, v1\nv_and_b32 v6, 7, v1\nv_lshrrev_b32 v11, 1, v5\nv_xor_b32 v12, v6, v11")
    a("s_lshl_b32 s34, s58, 7\ns_lshl_b32 s33, s60, 5\ns_add_u32 s34, s34, s33\nv_add_u32 v10, s34, v5\nv_mul_u32_u24 v10, 896, v10")
    a("v_lshl_add_u32 v96, v12, 4, v10\nv_xor_b32 v12, 4, v12\nv_lshl_add_u32 v97, v12, 4, v10\nv_add_u32 v97, 7168, v97\nv_add_u32 v98, 14336, v96\nv_add_u32 v99, 14336, v97")
    a("s_lshl_b32 s35, s60, 4\nv_add_u32 v7, s35, v5\nv_mul_u32_u24 v10, 2688, v7\nv_and_b32 v11, 1, v11\nv_lshlrev_b32 v11, 2, v11\nv_xor_b32 v11, v6, v11\nv_lshl_add_u32 v3, v11, 4, v10")
    a("s_lshl_b32 s34, s54, 7\nv_add_u32 v3, s34, v3\ns_lshl_b32 s36, s31, 10\ns_lshl_b32 s37, s60, 12\ns_lshl_b32 s59, s60, 11")
    a("s_lshl_b32 s35, s31, 3\nv_add_u32 v7, s35, v5\nv_mul_u32_u24 v10, 896, v7\nv_lshl_add_u32 v4, v11, 4, v10\nv_add_u32 v4, s34, v4")
    a("v_lshlrev_b32 v8, 4, v1\nv_mov_b32 v9, 0\nv_lshlrev_b32 v13, 2, v1")
    a("s_waitcnt lgkmcnt(0)")
    a("s_cmp_eq_u32 s28, 0\ns_cselect_b32 s4, s4, s10\ns_cselect_b32 s5, s5, s11\ns_cselect_b32 s6, s6, s12\ns_cselect_b32 s7, s7, s13")
    a("s_cselect_b32 s41, 0, 896\ns_cselect_b32 s43, 1792, 0\ns_add_u32 s42, s41, 896")
    srd(a,16,4,2048*448*2); srd(a,20,6,448*1344*2)
    vm=VM(a)
    def dma(u):
        part,i7=divmod(u,7)
        a(f"s_lshl_b32 s38, s40, 7\ns_mul_i32 s39, s40, 172032\ns_add_u32 s40, s40, 1\ns_cmp_eq_u32 s40, 7\ns_cselect_b32 s40, 0, s40")
        for i in range(2):
            a(f"s_add_u32 m0, s59, {WB+(u%6)*8192+i*1024}\ns_add_u32 s39, s39, {f's{41+part}' if i==0 else 21504}")
            vm.issue(("d",u),"buffer_load_dwordx4 v3, s[20:23], s39 offen lds")
        if part==0:
            for i in range(4):
                a(f"s_add_u32 m0, s37, {u*16384+i*1024}\ns_nop 0")
                vm.issue(("d",u),f"buffer_load_dwordx4 v{96+i}, s[16:19], s38 offen lds")
    a("s_cmp_ge_u32 s30, 28\ns_cbranch_scc1 L_A0\ns_cmp_lt_u32 s31, 4\ns_cbranch_scc1 L_A0")
    dma(0)
    a("L_A0:")
    srd(a,24,68,WS_SIZE); srd(a,44,66,256)
    a("s_and_b32 s55, s30, 1\ns_lshl_b32 s33, s32, 1\ns_add_u32 s55, s55, s33\ns_lshr_b32 s56, s30, 1")
    a("s_mul_i32 s33, s55, 7\ns_lshr_b32 s29, s33, 1\ns_lshl_b32 s29, s29, 9")
    a("s_lshl_b32 s34, s61, 3\ns_add_u32 s34, s34, s56\ns_and_b32 s34, s34, 15\ns_lshl_b32 s35, s60, 4\ns_add_u32 s34, s34, s35")
    a(f"s_lshl_b32 s70, s34, 15\ns_add_u32 s70, s70, s29\ns_add_u32 s70, s70, {KG}")
    a(f"s_lshl_b32 s71, s55, 6\ns_add_u32 s71, s71, s34\ns_lshl_b32 s71, s71, 11\ns_add_u32 s71, s71, {VF}")
    a(f"s_lshr_b32 s34, s33, 4\ns_add_u32 s35, s33, 6\ns_lshr_b32 s35, s35, 4\ns_sub_u32 s35, s35, s34\ns_lshl_b32 s34, s34, 11\ns_add_u32 s34, s34, {F1}\ns_lshl_b32 s35, s35, 11")
    a(f"v_and_b32 v10, 15, v1\nv_lshlrev_b32 v10, {CFG['fs']}, v10\nv_bfe_u32 v11, v1, 4, 1\nv_mul_u32_u24 v11, s35, v11\nv_add3_u32 v158, v10, v11, s34")
    a(f"s_sub_u32 s34, s34, {F1}\ns_lshl_b32 s35, s56, 7\ns_add_u32 s34, s34, s35\ns_lshl_b32 s34, s34, 2\ns_add_u32 s34, s34, {F7}\nv_lshlrev_b32 v11, 2, v11\nv_and_b32 v10, 3, v1\nv_lshl_add_u32 v11, v10, 7, v11")
    a("s_cmp_eq_u32 s31, 7\ns_cselect_b32 exec_hi, -1, 0\ns_mov_b32 exec_lo, 0\nv_add_u32 v158, s34, v11")
    a("s_cselect_b32 exec_lo, -1, 0\ns_mov_b32 exec_hi, 0\ns_lshl_b32 s35, s56, 9\ns_sub_u32 s34, s34, s35\ns_lshl_b32 s35, s55, 9\ns_add_u32 s34, s34, s35\nv_lshl_add_u32 v158, v10, 7, s34\ns_mov_b64 exec, -1")
    a(f"s_lshr_b32 s34, s53, 1\ns_and_b32 s34, s34, 15\ns_lshl_b32 s34, s34, 10\ns_add_u32 s34, s34, {F6}\nv_add_u32 v0, s34, v8")
    a("s_or_b32 s50, s50, 1\ns_lshl_b32 s34, s2, 3\ns_add_u32 s34, s34, s31\ns_cmp_lg_u32 s34, 2040\ns_cbranch_scc1 L_NN")
    a("v_mov_b32 v6, s50\nv_mov_b32 v7, s51\ns_mov_b64 exec, 1\nbuffer_store_dwordx2 v[6:7], v9, s[44:47], 0 offen sc1\ns_mov_b64 exec, -1\nL_NN:")
    a("s_cmp_ge_u32 s30, 28\ns_cbranch_scc1 L_IDLE\ns_cmp_lt_u32 s31, 4\ns_cbranch_scc1 L_CMP")
    def NONCE():
        L=lab("N"); D=lab("N")
        return (f"v_readfirstlane_b32 s50, v156\nv_readfirstlane_b32 s51, v157\ns_mov_b32 s52, {SPIN}\n{L}:\ns_cmp_lg_u32 s50, 0\ns_cbranch_scc1 {D}\ns_sub_u32 s52, s52, 1\ns_cmp_eq_u32 s52, 0\ns_cbranch_scc1 {D}\n"
          f"buffer_load_dwordx2 v[156:157], v9, s[44:47], 0 offen sc1\ns_waitcnt vmcnt(0)\nv_readfirstlane_b32 s50, v156\nv_readfirstlane_b32 s51, v157\ns_branch {L}\n{D}:")
    def get_nonce(): a(NONCE())
    nxt=1
    for g,grp in enumerate(GR):
        lim=min(20, grp[-1]+(CFG["la"] if g<6 else 2), (GR[g-2][-1] if g>=2 else -1)+6)
        while nxt<=lim: dma(nxt); nxt+=1
        if g==0: stamp(a,1)
        vm.wait(("d",grp[-1]))
        if 0<g<7: stamp(a,2+g,pst=True)
        a("s_barrier")
        if g==0: stamp(a,2)
    stamp(a,3); stamp(a,9,pst=True)
    a("buffer_load_dwordx2 v[156:157], v9, s[44:47], 0 offen sc1\ns_waitcnt vmcnt(0)"); get_nonce()
    stamp(a,4); stamp(a,5)
    if CFG.get("lsl",0): a(f"s_cmp_eq_u32 s31, 7\ns_cbranch_scc1 L_ATT\ns_sleep {CFG['lsl']}")
    a("s_branch L_ATT")
    a("L_CMP:")
    a(f"s_lshl_b32 s41, s58, 2\ns_add_u32 s41, s41, s60")
    a("s_lshl_b32 s34, s54, 4\ns_add_u32 s35, s34, 22\ns_add_u32 s34, s34, 6\ns_mul_i32 s34, s34, 9363\ns_lshr_b32 s34, s34, 16\ns_mul_i32 s35, s35, 9363\ns_lshr_b32 s35, s35, 16\ns_sub_u32 s35, s35, s34")
    for r in range(4): a(f"v_mov_b32 v{16+r}, 0\nv_mov_b32 v{20+r}, 0x3f803f80")
    a("v_lshrrev_b32 v5, 4, v1\nv_lshlrev_b32 v5, 17, v5\nv_bfe_u32 v6, v1, 2, 2\nv_lshl_add_u32 v5, v6, 9, v5\nv_and_b32 v6, 3, v1\nv_lshl_add_u32 v5, v6, 4, v5")
    a(f"v_mul_u32_u24 v6, 7296, v1\ns_lshl_b32 s38, s34, 17\ns_lshl_b32 s39, s41, 11\ns_add_u32 s38, s38, s39\ns_add_u32 s38, s38, {VF+448}")
    a(f"s_mul_i32 s39, s41, {TBV}\ns_lshl_b32 s42, s54, 4\ns_add_u32 s39, s39, s42\ns_add_u32 s39, s39, {VT+7168}")
    a("s_cmp_eq_u32 s35, 3\ns_cselect_b32 s49, 0xffff, 0\ns_cmp_eq_u32 s28, 0\ns_cselect_b32 s38, s38, s39\ns_cselect_b32 s48, -1, 15\ns_cselect_b32 s49, s49, 0\ns_cselect_b64 s[42:43], -1, 0")
    a("v_cndmask_b32 v5, v6, v5, s[42:43]\ns_mov_b64 exec, s[48:49]")
    a("buffer_store_dwordx4 v[20:23], v5, s[24:27], s38 offen sc1")
    a(f"s_mov_b64 exec, -1\ns_add_u32 s34, s34, s60\ns_cmp_lt_u32 s60, s35\ns_cselect_b32 s38, s28, 0\ns_cmp_eq_u32 s34, s58\ns_cselect_b32 s38, s38, 0\ns_cmp_eq_u32 s38, 0\ns_cbranch_scc1 L_NZ")
    a(f"s_lshl_b32 s38, s34, 12\ns_add_u32 s38, s38, {KVS}\ns_lshl_b32 s39, s34, 7\ns_add_u32 s39, s39, {CNT}")
    for k in range(4): a(f"buffer_store_dwordx4 v[16:19], v8, s[24:27], s38 offen offset:{k*1024} sc1")
    a("s_mov_b64 exec, 1\nbuffer_store_dwordx4 v[16:19], v9, s[24:27], s39 offen sc1\ns_mov_b64 exec, -1\nL_NZ:")
    a("s_lshr_b32 s43, s31, 1\ns_lshl_b32 s41, s58, 1\ns_add_u32 s41, s41, s57\ns_lshl_b32 s41, s41, 1\ns_lshl_b32 s42, s54, 1\ns_add_u32 s42, s42, s43")
    a("v_and_b32 v5, 31, v1\nv_lshrrev_b32 v6, 5, v1\ns_lshl_b32 s34, s57, 6\nv_add_u32 v7, s34, v5")
    a("v_bfe_u32 v10, v7, 1, 3\nv_xor_b32 v10, v10, v6\nv_lshlrev_b32 v7, 7, v7")
    for ks in range(4):
        a(f"v_xor_b32 v11, {2*ks}, v10\nv_lshl_add_u32 v{160+ks}, v11, 4, v7\nv_add_u32 v{165+ks}, 65536, v{160+ks}")
    a("v_bfe_u32 v7, v1, 2, 2\nv_lshl_add_u32 v10, v6, 3, v7\nv_lshlrev_b32 v10, 7, v10")
    a("v_bfe_u32 v11, v1, 4, 1\nv_lshlrev_b32 v11, 5, v11\nv_and_b32 v12, 3, v1\nv_lshl_add_u32 v11, v12, 3, v11")
    a("s_lshl_b32 s34, s43, 6\nv_add_u32 v11, s34, v11\nv_lshrrev_b32 v7, 1, v7\nv_lshlrev_b32 v7, 6, v7\nv_xor_b32 v11, v11, v7")
    a(f"s_mov_b32 s34, {WB}\nv_add3_u32 v164, v10, v11, s34")
    a(f"s_cmp_eq_u32 s28, 0\ns_cselect_b32 s34, 0, {f2u(1e-6)}")
    for r in range(16,80): a(f"v_mov_b32 v{r}, s34")
    a("s_lshl_b32 s34, s42, 5\nv_add_u32 v152, s34, v5\nv_mul_u32_u24 v10, 2341, v152\nv_lshrrev_b32 v10, 16, v10")
    a("v_mul_u32_u24 v11, 28, v10\nv_sub_u32 v11, v152, v11\nv_lshlrev_b32 v10, 17, v10\nv_lshl_add_u32 v10, v11, 4, v10\nv_lshl_add_u32 v153, v6, 9, v10")
    a("v_mul_u32_u24 v10, 7168, v6\nv_lshl_add_u32 v154, v152, 4, v10\nv_lshl_add_u32 v155, v6, 7, v154\nv_lshlrev_b32 v159, 2, v6")
    a("buffer_load_dwordx2 v[156:157], v9, s[44:47], 0 offen sc1")
    def rdl(k):
        u,ks=divmod(k,4); sl=u%7
        X=112+12*(k%3); W=X+8; xa=(160 if sl<4 else 165)+ks
        w=lambda uu: f"ds_read_b64_tr_b16 {v(W+2*uu,2)}, v164 offset:{(u%6)*8192+ks*2048+uu*512}"
        return [w(0),w(1),f"ds_read_b128 {v(X,4)}, v{xa} offset:{(sl%4)*16384}",f"ds_read_b128 {v(X+4,4)}, v{xa} offset:{(sl%4)*16384+4096}"]
    def swp(P): return [f"v_permlane32_swap_b32 v{P}, v{P+2}",f"v_permlane32_swap_b32 v{P+1}, v{P+3}",f"v_permlane32_swap_b32 v{P+4}, v{P+6}",f"v_permlane32_swap_b32 v{P+5}, v{P+7}"]
    def cvt(d,s_,n=8): return [f"v_cvt_pk_bf16_f32 v{d+j}, v{s_+2*j}, v{s_+1+2*j}" for j in range(n)]
    first={g[0] for g in GR}
    def mainloop(p,fills):
        stamp(a,1)
        a("s_barrier")
        stamp(a,2)
        for x in rdl(0)+rdl(1): a(x)
        for k in range(84):
            u,ks=divmod(k,4); part=u//7; X=112+12*(k%3); W=X+8; col=(part+p)%3; A=16+32*col
            z="0" if (col==2 and k%28==0) else None
            tr=(col==2) or (col==1 and p==1)
            mm=[mfma(A+16*t,X+4*t,W,z) if tr else mfma(A+16*t,W,X+4*t) for t in range(2)]
            nx=rdl(k+2) if k+2<84 else []
            bar=nx and (k+2)%4==0 and (k+2)//4 in first
            a(f"s_waitcnt lgkmcnt({0 if (bar or k==83) else 4})")
            if bar:
                if (k+2)//4<7: stamp(a,2+(k+2)//4,pst=True)
                a("s_barrier")
            f=fills[part-1] if part>0 and k%28>=2 else []
            n=CFG["fill"][p]
            a(mm[0])
            for x in nx[:2]: a(x)
            for x in f[:(n+1)//2]: a(x)
            del f[:(n+1)//2]
            a(mm[1])
            for x in nx[2:]: a(x)
            for x in f[:n//2]: a(x)
            del f[:n//2]
            if k%28==27:
                for x in f: a(x)
                del f[:]
        stamp(a,3); stamp(a,9,pst=True)
        a("s_nop 10")
        for x in fills[2]: a(x)
    ST="buffer_store_dwordx4 {}, v{}, s[24:27], s{} offen offset:{} sc1"
    a("s_cmp_eq_u32 s28, 0\ns_cbranch_scc0 L_PB")
    a(f"s_mov_b32 s34, {f2u(CS)}\ns_lshl_b32 s35, s41, 15\ns_lshl_b32 s37, s42, 11\ns_add_u32 s35, s35, s37\ns_lshl_b32 s37, s41, 11\ns_add_u32 s37, s37, {VF}")
    a(f"s_lshl_b32 s38, s42, 6\ns_add_u32 s38, s38, s41\ns_lshl_b32 s38, s38, 2\ns_add_u32 s38, s38, {NRM}")
    def qk_epi(A,scale,noff,last):
        f=[]
        for t in range(2):
            T=176+8*t
            if scale: f+=[f"v_mul_f32 v{A+16*t+r}, s34, v{A+16*t+r}" for r in range(16)]
            f+=cvt(T,A+16*t)+[f"v_mul_f32 v{170+t}, v{A+16*t}, v{A+16*t}",f"v_fmac_f32 v{170+t}, v{A+16*t+1}, v{A+16*t+1}"]+swp(T)
            f+=[ST.format(v(T,4),8,35,0),ST.format(v(T+4,4),8,35,1024)+f"\ns_add_u32 s35, s35, {TBK if t==0 else last}"]
        for r in range(2,16): f+=[f"v_fmac_f32 v170, v{A+r}, v{A+r}",f"v_fmac_f32 v171, v{A+16+r}, v{A+16+r}"]
        f+=["s_nop 1\nv_permlane32_swap_b32 v170, v171\nv_add_f32 v170, v170, v171"]
        for m in ("quad_perm:[1,0,3,2]","quad_perm:[2,3,0,1]","row_half_mirror","row_mirror","row_bcast:15"):
            f+=[f"s_nop 1\nv_max_f32_dpp v170, v170, v170 {m} row_mask:{'0xa' if 'bcast' in m else '0xf'} bank_mask:0xf"]
        f+=[f"s_mov_b32 exec_lo, 0x80000000\ns_mov_b32 exec_hi, 0x80000000\nbuffer_store_dword v170, v159, s[24:27], s38 offen offset:{noff} sc1\ns_mov_b64 exec, -1"]
        return f
    fv=cvt(112,80)+[ST.format(v(112,4),153,37,0),ST.format(v(116,4),153,37,1024)]+cvt(120,96)+[ST.format(v(120,4),153,37,2048),ST.format(v(124,4),153,37,3072)]
    mainloop(0,[qk_epi(16,True,0,KG-TBK),qk_epi(48,False,3584,0),fv])
    a("s_branch L_PE")
    a("L_PB:")
    a(f"s_mov_b32 s34, {f2u(LOG2E)}\nv_mov_b32 v170, {f2u(-1e-6*LOG2E)}\nv_mov_b32 v171, {f2u(1e-6)}")
    a(f"s_mul_i32 s43, s41, {TBS}\ns_add_u32 s35, s43, {PKT}\ns_lshl_b32 s37, s42, 11\ns_add_u32 s37, s37, s43\ns_add_u32 s37, s37, {PQG}\ns_mul_i32 s39, s41, {TBV}\ns_add_u32 s39, s39, {VT}")
    def phi(base,tmp,dst):
        f=[f"v_fma_f32 v{tmp+r}, v{base+r}, s34, v170" for r in range(16)]
        for r in range(16): f+=[f"v_exp_f32 v{tmp+r}, v{tmp+r} clamp",f"v_max_f32 v{base+r}, v{base+r}, v171"]
        return f+[f"v_add_f32 v{base+r}, v{base+r}, v{tmp+r}" for r in range(16)]+cvt(dst,base)
    fq=[]; fk=[]; fv=[]
    for t in range(2):
        T=192+8*t
        fq+=phi(16+16*t,176,T)+["s_nop 0"]+swp(T)+[ST.format(v(T,4),8,37,0),ST.format(v(T+4,4),8,37,1024)+f"\ns_add_u32 s37, s37, {TBS}"]
        fk+=phi(48+16*t,176,T)+[ST.format(v(T+4*m,4),154,35,0)+"\ns_add_u32 s35, s35, 14336" for m in range(2)]
        fv+=cvt(208+8*t,80+16*t)+[ST.format(v(208+8*t+4*m,4),155,39,0)+"\ns_add_u32 s39, s39, 14592" for m in range(2)]
    pad=CFG["f7"]*CFG["fill"][1]-len(fv)
    fv+=[""]*pad+[f"s_lshl_b32 s43, s54, 4\ns_add_u32 s43, s43, s58\ns_lshl_b32 s43, s43, 2\ns_add_u32 s43, s43, s31\ns_lshl_b32 s43, s43, 7\ns_add_u32 s43, s43, {F7}\ns_waitcnt vmcnt(0)\n"+NONCE()+
         "\nv_mov_b32 v14, s50\nv_mov_b32 v15, s51\ns_mov_b64 exec, 1\nbuffer_store_dwordx2 v[14:15], v9, s[24:27], s43 offen sc0 sc1\ns_mov_b64 exec, -1"]
    mainloop(1,[fk,fv,fq])
    a("L_PE:")
    stamp(a,4); stamp(a,10,pst=True)
    L=lab("F")
    a(f"s_lshl_b32 s34, s28, 3\ns_add_u32 s34, s34, s54\ns_lshl_b32 s34, s34, 11\ns_lshl_b32 s35, s58, {CFG['fs']}\ns_add_u32 s34, s34, s35\ns_add_u32 s34, s34, {F1}")
    a("s_waitcnt vmcnt(0)"); get_nonce()
    a(f"s_lshl_b32 s35, s31, 2\nv_mov_b32 v10, {WB+3*8192}\nv_add_u32 v11, s35, v10\nv_mov_b32 v14, s50\nds_write_b32 v11, v14\ns_waitcnt lgkmcnt(0)\nds_read_b128 v[16:19], v10\ns_waitcnt lgkmcnt(0)")
    a(f"v_xor_b32 v16, v16, v14\nv_xor_b32 v17, v17, v14\nv_xor_b32 v18, v18, v14\nv_xor_b32 v19, v19, v14\nv_or3_b32 v16, v16, v17, v18\nv_or_b32 v16, v16, v19\ns_nop 0\nv_readfirstlane_b32 s35, v16\ns_nop 0")
    a(f"s_cmp_lg_u32 s35, 0\ns_cbranch_scc1 {L}")
    flag_store(a,34); a(f"{L}:")
    stamp(a,5); stamp(a,11,pst=True)
    a("s_branch L_ATT")
    a("L_IDLE:\ns_sub_u32 s34, s30, 28\ns_lshl_b32 s34, s34, 3\ns_add_u32 s34, s34, s31")
    if CFG["cpf"]:
        a(f"s_getpc_b64 s[38:39]\nL_PC:\ns_sub_u32 s38, s38, L_PC-{N}\ns_subb_u32 s39, s39, 0\ns_lshl_b32 s35, s34, 10\nv_add_u32 v16, s35, v8")
        for k in range(2):
            a(f"v_min_u32 v17, L_CEND-{N}-16, v16\nv_mov_b32 v19, s39\nv_add_co_u32 v18, vcc, s38, v17\ns_nop 1\nv_addc_co_u32 v19, vcc, 0, v19, vcc\nglobal_load_dwordx4 v[{24+4*k}:{27+4*k}], v[18:19], off\nv_add_u32 v16, 32768, v16")
    a("buffer_load_dwordx2 v[156:157], v9, s[44:47], 0 offen sc1\ns_mul_i32 s34, s34, 13312")
    srd(a,16,8,448*448*2); srd(a,20,14,448*448*2)
    for k in range(13):
        a(f"buffer_load_dwordx4 v[16:19], v8, s[16:19], s34 offen\nbuffer_load_dwordx4 v[20:23], v8, s[20:23], s34 offen\ns_add_u32 s34, s34, 1024")
    stamp(a,1); a("s_waitcnt vmcnt(0)"); get_nonce()
    stamp(a,2); stamp(a,3); stamp(a,4); stamp(a,5)
    a("L_ATT:")
    vm=VM(a)
    Q=[16,24]; O=[64,80]; S=[96,112]; P=[128,136]; R=192
    PL1="buffer_load_dwordx2 v[10:11], v158, s[24:27], 0 offen sc1"
    PC1="v_cmp_ne_u64 s[48:49], s[50:51], v[10:11]\ns_nop 0"
    PL3="buffer_load_dwordx4 v[32:35], v0, s[24:27], 0 offen "+CFG["p3f"]
    PC3="v_cmp_ne_u64 s[48:49], s[50:51], v[32:33]\nv_cmp_ne_u64 s[34:35], s[50:51], v[34:35]\ns_nop 0\ns_or_b64 s[48:49], s[48:49], s[34:35]"
    def ld(vm,kind,kt):
        kt0=kt
        base=R+16*(kt%4)+(0 if kind=="K" else 8)
        if CFG.get("nokv") and kt>=4: kt=kt%4
        a(f"s_xor_b32 s42, s70, {kt*TBK}" if kind=="K" else f"s_xor_b32 s42, s71, {kt*2048}")
        kt=kt0
        for m in range(2):
            vm.issue((kind,kt),f"buffer_load_dwordx4 {v(base+4*m,4)}, v{8 if kind=='K' else 5}, s[24:27], s42 offen offset:{m*1024} {CFG.get('kvf','sc1')}")
    def W(vmx,tag):
        if vmx: vmx.wait(tag)
        else: a("s_waitcnt vmcnt(0)")
    def I(vmx,tag,txt):
        if vmx: vmx.issue(tag,txt,True)
        else: a(txt)
    def i1_a(vmx):
        a("s_mul_i32 s33, s55, 7\ns_lshr_b32 s34, s33, 4\ns_add_u32 s34, s34, 448")
        a("v_and_b32 v3, 19, v1\nv_bfe_u32 v2, v1, 2, 1\nv_lshl_add_u32 v3, v2, 3, v3\nv_bfe_u32 v2, v1, 3, 1\nv_lshl_add_u32 v3, v2, 2, v3")
        a("v_lshrrev_b32 v5, 5, v1\nv_mul_u32_u24 v6, 7168, v5\nv_lshl_add_u32 v3, v3, 4, v6\nv_lshl_add_u32 v6, v5, 7, v6")
        a("v_and_b32 v5, 31, v1\nv_add_u32 v7, 20, v5\nv_lshrrev_b32 v7, 5, v7\nv_sub_u32 v2, v5, v7\nv_lshrrev_b32 v7, 4, v5\nv_sub_u32 v2, v2, v7\nv_add_u32 v7, 4, v5\nv_lshrrev_b32 v7, 5, v7\nv_sub_u32 v2, v2, v7")
        a("s_lshl_b32 s33, s33, 2\nv_add_u32 v2, s33, v2\nv_and_b32 v5, 11, v5\nv_cmp_eq_u32 s[48:49], 11, v5\nv_mov_b32 v7, s34\ns_nop 0\nv_cndmask_b32 v2, v2, v7, s[48:49]")
        a("v_lshl_add_u32 v2, v2, 4, v6")
    def i1_b(vmx):
        a(f"s_mul_i32 s34, s56, {4*TBS}\ns_lshr_b32 s35, s29, 2\ns_add_u32 s34, s34, s35\ns_add_u32 s34, s34, {PKT}\ns_mul_i32 s35, s56, {4*TBV}\ns_add_u32 s35, s35, {VT}")
        for i in range(8):
            I(vmx,"pay",f"buffer_load_dwordx4 {v(32+4*i,4)}, v3, s[24:27], s34 offen sc1")
            I(vmx,"pay",f"buffer_load_dwordx4 {v(144+4*i,4)}, v2, s[24:27], s35 offen sc1")
            if i<7: a("s_add_u32 s34, s34, 14336\ns_add_u32 s35, s35, 14592")
    def i1_c(vmx):
        W(vmx,"pay")
        for i in range(8): a(mfma(176,32+4*i,144+4*i,"0" if i==0 else None))
    def i1_d(vmx):
        a(f"s_lshl_b32 s34, s55, 12\ns_add_u32 s34, s34, {KVS}")
        for r in range(16): I(vmx,"at",f"buffer_atomic_add_f32 v{176+r}, v13, s[24:27], s34 offen offset:{r*256}")
    def i1_e(vmx):
        if CFG["late"]: W(vmx,"at")
        a(f"s_lshl_b32 s34, s55, 7\ns_add_u32 s34, s34, {CNT}\nv_mov_b32 v7, 1\ns_mov_b64 exec, 1")
        I(vmx,"cn","buffer_atomic_add v7, v9, s[24:27], s34 offen"); a("s_mov_b64 exec, -1")
    PL4="buffer_load_dword v14, v9, s[24:27], s33 offen "+CFG["p4f"]+"\nbuffer_load_dwordx2 v[6:7], v10, s[24:27], 0 offen "+CFG["p4f"]
    def i2_a(vmx):
        a(f"s_mul_i32 s33, s55, 7\ns_lshr_b32 s34, s33, 4\ns_add_u32 s35, s33, 6\ns_lshr_b32 s35, s35, 4\ns_sub_u32 s35, s35, s34\ns_lshl_b32 s35, s35, 11")
        a(f"s_lshl_b32 s34, s34, 11\ns_lshl_b32 s33, s56, {CFG['fs']}\ns_add_u32 s34, s34, s33\ns_add_u32 s34, s34, {F2}\nv_and_b32 v10, 1, v1\nv_mul_u32_u24 v10, s35, v10\nv_add_u32 v10, s34, v10")
        a(f"s_lshl_b32 s33, s55, 7\ns_add_u32 s33, s33, {CNT}")
        for x in PL4.split("\n"): I(vmx,"p4",x)
    def i2_b(vmx):
        W(vmx,"p4"); spin(a,"v_cmp_gt_u32 s[48:49], 16, v14\nv_cmp_ne_u64 s[34:35], s[50:51], v[6:7]\ns_nop 0\ns_or_b64 s[48:49], s[48:49], s[34:35]",PL4)
        a(f"s_lshl_b32 s34, s55, 12\ns_add_u32 s34, s34, {KVS}\ns_lshl_b32 s35, s56, 2\ns_add_u32 s35, s35, s60\ns_mul_i32 s35, s35, {TBS}\ns_add_u32 s35, s35, s29\ns_add_u32 s35, s35, {PQG}")
        for r in range(16): I(vmx,"kv",f"buffer_load_dword v{144+r}, v13, s[24:27], s34 offen offset:{r*256} sc1")
        for m in range(2): I(vmx,"kv",f"buffer_load_dwordx4 {v(168+4*m,4)}, v8, s[24:27], s35 offen offset:{m*1024} sc1")
    def qmask(b):
        a(f"v_cndmask_b32 v{b}, v{b}, 0, s[38:39]\nv_cndmask_b32 v{b+1}, v{b+1}, 0, s[38:39]\nv_cndmask_b32 v{b+6}, v{b+6}, 0, s[40:41]\nv_cndmask_b32 v{b+7}, v{b+7}, 0, s[40:41]")
    def i2_c(vmx):
        W(vmx,"kv")
        for j in range(8): a(f"v_cvt_pk_bf16_f32 v{160+j}, v{144+2*j}, v{145+2*j}")
        qmask(168); a("s_nop 1")
        a(mfma(176,160,168,"0")); a(mfma(176,164,172))
    def i2_d(vmx):
        a(f"v_add_f32 v15, {f2u(1e-6)}, v183\nv_rcp_f32 v15, v15\ns_nop 0")
        for r in range(16): a(f"v_mul_f32 v{176+r}, v{176+r}, v15" if r%8!=7 else f"v_mov_b32 v{176+r}, {TAG}")
        for j in range(8): a(f"v_cvt_pk_bf16_f32 v{160+j}, v{176+2*j}, v{177+2*j}")
        for m in range(2): I(vmx,"ob",f"buffer_store_dwordx4 {v(160+4*m,4)}, v8, s[24:27], s58 offen offset:{m*1024} {CFG['osf']}")
    def f6(vmx):
        a(f"s_lshl_b32 s34, s56, 4\ns_add_u32 s34, s34, s55\ns_lshl_b32 s34, s34, 3\ns_add_u32 s34, s34, s31\ns_lshl_b32 s34, s34, 3\ns_add_u32 s34, s34, {F6}")
        if vmx: vmx.wait("clr")
        flag_store(a,34,vmx)
    def special(f,vmx):
        L=lab("S"); a(f"s_cbranch_vccz {L}"); f(vmx); a(f"{L}:")
    def ofr(p,F):
        return "\n".join(f"buffer_load_dwordx4 {v(F+4*f,4)}, v8, s[24:27], s{62+f//4} offen offset:{(f%4)*1024} {CFG['off']}" for f in range(8))
    def ofr_addr(p):
        a(f"s_lshl_b32 s62, s53, 1\ns_add_u32 s62, s62, s57\ns_lshl_b32 s62, s62, 2\ns_lshr_b32 s63, s31, 1\ns_add_u32 s62, s62, s63\ns_lshl_b32 s62, s62, 13\ns_add_u32 s62, s62, {OF+p*2*MB}\ns_add_u32 s63, s62, 4096")
    if CFG.get("ep",1): a("s_setprio 3")
    srd(a,16,8,448*448*2); srd(a,20,14,448*448*2)
    def wodma(k,vmx):
        p,j=divmod(k,7); b=(WOA if p else WOB)+j*8192
        a(f"s_add_u32 m0, s36, {b}\ns_mov_b32 s43, {j*64*896}")
        x=f"buffer_load_dwordx4 v4, s[{20-4*p}:{23-4*p}], s43 offen lds"
        if vmx: vmx.issue("wo",x)
        else: a(x)
    a("s_cmp_eq_u32 s31, 7\ns_cselect_b64 vcc, -1, 0")
    special(i1_a,vm)
    a("s_lshl_b32 s34, s56, 2\ns_lshl_b32 s35, s61, 1\ns_add_u32 s34, s34, s35\ns_lshr_b32 s35, s60, 1\ns_add_u32 s34, s34, s35\ns_lshl_b32 s34, s34, 4\ns_add_u32 s34, s34, s55")
    a(f"s_lshl_b32 s34, s34, 1\ns_and_b32 s35, s60, 1\ns_add_u32 s34, s34, s35\ns_lshl_b32 s34, s34, 10\ns_add_u32 s59, s34, {OF}")
    a(f"s_lshl_b32 s34, s56, 2\ns_add_u32 s34, s34, s60\ns_lshl_b32 s34, s34, 4\ns_add_u32 s34, s34, s55\ns_lshl_b32 s34, s34, 11\ns_add_u32 s34, s34, {OF+2*MB}\ns_cmp_lt_u32 s31, 4\ns_cselect_b32 s58, s34, {WS_SIZE}")
    a("v_and_b32 v5, 31, v1\nv_add_u32 v7, 20, v5\nv_lshrrev_b32 v7, 5, v7\nv_sub_u32 v6, v5, v7\nv_lshrrev_b32 v7, 4, v5\nv_sub_u32 v6, v6, v7\nv_add_u32 v7, 4, v5\nv_lshrrev_b32 v7, 5, v7\nv_sub_u32 v6, v6, v7")
    a("v_and_b32 v5, 11, v5\nv_cmp_eq_u32 s[48:49], 11, v5\nv_lshrrev_b32 v5, 5, v1\nv_lshlrev_b32 v5, 9, v5\nv_cndmask_b32 v6, v6, 28, s[48:49]\nv_lshl_add_u32 v5, v6, 4, v5")
    a(f"s_mul_i32 s33, s55, 7\ns_lshr_b32 s34, s33, 3\ns_add_u32 s35, s33, 6\ns_lshr_b32 s35, s35, 3\ns_lshl_b32 s34, s34, 8\ns_lshl_b32 s35, s35, 8")
    a(f"s_add_u32 s34, s34, {NRM}\ns_add_u32 s35, s35, {NRM}\ns_lshl_b32 s37, s56, 4\nv_and_b32 v12, 12, v13\nv_add_u32 v12, s37, v12")
    a(f"s_lshl_b32 s37, s56, 2\ns_lshl_b32 s38, s61, 1\ns_add_u32 s37, s37, s38\ns_lshl_b32 s37, s37, 15\ns_add_u32 s37, s37, s29\ns_add_u32 s38, s37, {TBK}")
    NP=CFG.get("np",1); PR=[10,16,18,20][:NP]
    pl=lambda r: f"buffer_load_dwordx2 v[{r}:{r+1}], v158, s[24:27], 0 offen {CFG['pf']}"
    a(f"s_cbranch_vccnz L_P7\ns_cmp_lg_u32 s31, {CFG.get('pw',6)}\ns_cbranch_scc1 L_B1\nL_P7:\ns_mov_b32 exec_hi, vcc_hi")
    for k,r in enumerate(PR):
        a(pl(r))
        if k<NP-1: a(f"s_sleep {CFG.get('psl',10)}")
    a(f"s_mov_b32 s52, {SPIN}\nL_PL:")
    for r in PR:
        a(f"s_waitcnt vmcnt({NP-1})\nv_cmp_ne_u64 s[48:49], s[50:51], v[{r}:{r+1}]\ns_nop 0\ns_cmp_eq_u64 s[48:49], 0\ns_cbranch_scc1 L_PD\ns_sleep {CFG.get('psl2',2)}\n{pl(r)}")
    a("s_sub_u32 s52, s52, 1\ns_cbranch_scc0 L_PL\nL_PD:\ns_mov_b64 exec, -1")
    stamp(a,6)
    def first(vmx):
        vmx.issue("n","buffer_load_dword v10, v13, s[24:27], s34 offen offset:3584 sc1")
        vmx.issue("n","buffer_load_dword v11, v13, s[24:27], s35 offen offset:3584 sc1")
        vmx.issue("n","buffer_load_dword v14, v12, s[24:27], s34 offen sc1")
        vmx.issue("n","buffer_load_dword v15, v12, s[24:27], s35 offen sc1")
        for qb in range(2):
            for m in range(2):
                vmx.issue("q",f"buffer_load_dwordx4 {v(Q[qb]+4*m,4)}, v8, s[24:27], s{37+qb} offen offset:{m*1024} sc1")
        ld(vmx,"K",0)
    a("s_cbranch_vccz L_B1\ns_mov_b64 s[62:63], s[34:35]")
    i1_b(None); i1_c(None); a("s_nop 15\ns_nop 3")
    if not CFG["late"]: i1_d(None)
    a("s_mov_b64 s[34:35], s[62:63]\nL_B1:\ns_barrier")
    if CFG.get("x7"): stamp(a,3)
    first(vm)
    if CFG.get("pb",1): a("s_barrier")
    if CFG.get("x7"): stamp(a,4)
    ld(vm,"K",1); ld(vm,"V",0)
    def clr(vmx):
        vmx.issue("clr","buffer_store_dwordx4 v[36:39], v8, s[24:27], s59 offen sc1")
        for m in range(2): vmx.issue("clr",f"buffer_store_dwordx4 v[36:39], v8, s[24:27], s58 offen offset:{m*1024} sc1")
    SCH={0:(("V",1),("K",2),("K",3),"C"),1:(("K",2),),2:()}[CFG["pro"]]
    LSCH={0:{},1:{0:(("V",1),("K",3)),1:(("V",2),("K",4)),2:(("V",3),),3:(("K",5),"C")},
          2:{0:(("K",2),("V",1)),1:(("K",3),("V",2)),2:(("K",4),("V",3)),3:(("K",5),"C")}}[CFG["pro"]]
    def sch(l,vmx):
        for x in l:
            if x=="C": clr(vmx)
            else: ld(vmx,*x)
    for r in range(4): a(f"v_mov_b32 v{36+r}, 0")
    sch(SCH,vm)
    if CFG["late"]: special(i1_d,vm)
    if CFG["stop"]=="P":
        a("s_waitcnt vmcnt(0)"); stamp_out(a,7); a("L_END:\ns_endpgm"); return a
    a("s_bitcmp1_b32 s55, 0\ns_cselect_b32 s38, -1, 0\ns_mov_b32 s39, 0\ns_mov_b32 s40, 0\ns_cselect_b32 s41, 0, -1")
    vm.wait("n")
    if CFG.get("x7"): stamp(a,5)
    if not CFG["late"]:
        special(i1_e,vm)
    a("v_add_f32 v10, v10, v11\nv_add_f32 v14, v14, v15\ns_nop 1")
    for m in ("quad_perm:[1,0,3,2]","quad_perm:[2,3,0,1]","row_half_mirror","row_mirror"):
        a(f"v_max_f32_dpp v10, v10, v10 {m} row_mask:0xf bank_mask:0xf\ns_nop 0")
        if "quad" in m: a(f"v_max_f32_dpp v14, v14, v14 {m} row_mask:0xf bank_mask:0xf")
        else: a("s_nop 0")
    a("v_readlane_b32 s32, v10, 0\nv_readlane_b32 s33, v10, 16\nv_readlane_b32 s34, v10, 32\nv_readlane_b32 s35, v10, 48\ns_nop 1")
    a("s_max_u32 s32, s32, s33\ns_max_u32 s34, s34, s35\ns_max_u32 s32, s32, s34")
    a("v_mul_f32 v14, s32, v14\ns_nop 0\nv_readfirstlane_b32 s32, v14\ns_nop 1")
    vm.wait("q"); qmask(Q[0]); qmask(Q[1])
    a(f"s_cmp_le_u32 s32, {f2u(TH*TH)}\ns_cbranch_scc0 L_SLOW")
    def Kf(kt,m): return R+16*(kt%4)+4*m
    def Vf(kt,m): return R+16*(kt%4)+8+4*m
    NT=32
    def qk(i,m):
        kt,qb=divmod(i,2)
        if m==0 and qb==0: vm.wait(("K",kt))
        a(mfma(S[qb],Kf(kt,m),Q[qb]+4*m,"0" if m==0 else None))
    def pv(i,m):
        kt,qb=divmod(i,2)
        if m==0 and qb==0: vm.wait(("V",kt))
        a(mfma(O[qb],Vf(kt,m),P[qb]+4*m,"0" if (kt==0 and m==0) else None))
    def e(i,r): qb=i%2; return f"v_exp_f32 v{S[qb]+r}, v{S[qb]+r}"
    def c(i,j): qb=i%2; return f"v_cvt_pk_bf16_f32 v{P[qb]+j}, v{S[qb]+2*j}, v{S[qb]+2*j+1}"
    ins=dict(zip(CFG['ins'],(i2_a,i2_b,i2_c,i2_d))); t2=CFG['ins'][0]
    if CFG.get("noB"): ins={}
    stamp(a,7)
    a("s_setprio 3")
    qk(0,0); qk(0,1)
    a("s_nop 11")
    for i in range(NT):
        seq=[e(i,0),e(i,1),e(i,2),c(i,0),e(i,3),e(i,4),c(i,1),e(i,5),e(i,6),c(i,2),e(i,7),e(i,8),c(i,3),e(i,9),e(i,10),c(i,4),e(i,11),e(i,12),c(i,5),e(i,13),e(i,14),c(i,6),e(i,15)]
        if i in CFG["prio"]: a(f"s_setprio {2-CFG['prio'].index(i)}")
        a(seq[0])
        if i>0: a(c(i-1,7))
        if i+1<NT: qk(i+1,0)
        for x in seq[1:5]: a(x)
        if i+1<NT: qk(i+1,1)
        for x in seq[5:11]: a(x)
        if i>0: pv(i-1,0)
        if i==t2:
            vm.drop_sp(); a("s_cmp_lt_u32 s31, 4\ns_cselect_b64 vcc, -1, 0")
        if i in ins: special(ins[i],vm)
        j=i//2
        if i in LSCH: sch(LSCH[i],vm)
        elif i%2==0:
            if j+2<16: ld(vm,"V",j+2)
        else:
            if j+4<16: ld(vm,"K",j+4)
        if CFG["late"] and i==CFG["ie"]: special(i1_e,vm)
        if 0<=i-CFG["wo0"]<14: wodma(i-CFG["wo0"],vm)
        if i==CFG["f6"]: f6(vm)
        if i==CFG["p3"]: vm.issue("p3",PL3)
        if i==30:
            vm.drop_sp(); vm.wait("p3"); spin(a,PC3,PL3)
        for x in seq[11:17]: a(x)
        if i>0: pv(i-1,1)
        for x in seq[17:23]: a(x)
    a("s_nop 0"); a(c(NT-1,7)); a("s_nop 1")
    pv(NT-1,0); pv(NT-1,1)
    a("L_TAIL:")
    stamp(a,8)
    def red_write(B,rank,dmul,dadd,base):
        for g in range(4):
            L=lab("R"); E=lab("R")
            a(f"s_sub_u32 s34, s{rank}, {g+1}\ns_and_b32 s34, s34, 3\ns_cmp_eq_u32 s34, 3\ns_cbranch_scc1 {L}")
            a(f"s_lshl_b32 s34, s34, 11\ns_mul_i32 s35, s{dadd}, 6144\ns_add_u32 s34, s34, s35\ns_add_u32 s34, s34, {base+g*dmul*6144}\nv_add_u32 v10, s34, v8")
            a(f"ds_write_b128 v10, {v(B+8*g,4)}\nds_write_b128 v10, {v(B+8*g+4,4)} offset:1024\ns_branch {E}\n{L}:")
            for r in range(8): a(f"v_mov_b32 v{96+r}, v{B+8*g+r}")
            a(f"{E}:")
    def red_read(base):
        a(f"s_mul_i32 s34, s31, 6144\ns_add_u32 s34, s34, {base}\nv_add_u32 v10, s34, v8")
        for q in range(6): a(f"ds_read_b128 {v(104+4*q,4)}, v10 offset:{q*1024}")
        a("s_waitcnt lgkmcnt(2)")
        for r in range(8): a(f"v_add_f32 v{96+r}, v{96+r}, v{104+r}")
        a("s_waitcnt lgkmcnt(0)")
        for r in range(8): a(f"v_add_f32 v{112+r}, v{112+r}, v{120+r}")
        for r in range(8): a(f"v_add_f32 v{96+r}, v{96+r}, v{112+r}")
    a("s_lshl_b32 s33, s61, 2\ns_lshr_b32 s32, s31, 1")
    a("v_lshrrev_b32 v6, 5, v1\nv_bfe_u32 v7, v1, 2, 2\nv_lshl_add_u32 v11, v6, 2, v7\nv_min_u32 v7, 2, v7\nv_mad_u32_u24 v12, v6, 3, v7\nv_add_u32 v12, 8, v12")
    a("v_bfe_u32 v5, v1, 4, 1\nv_lshlrev_b32 v5, 5, v5\nv_and_b32 v7, 3, v1\nv_lshl_add_u32 v5, v7, 3, v5\ns_mul_i32 s34, s32, 14336\ns_add_u32 s34, s34, %d\nv_add_u32 v5, s34, v5"%WOB)
    for m in range(2):
        for u in range(2):
            d=240+2*m+u
            if m: a(f"v_add_u32 v{11+u}, 14, v{11+u}")
            a(f"v_bfe_u32 v7, v{11+u}, 1, 1\nv_lshl_add_u32 v{d}, v{11+u}, 7, v5\nv_lshl_add_u32 v{d}, v7, 6, v{d}\nv_xor_b32 v{d+4}, 64, v{d}")
    red_write(64,60,1,33,EX)
    a("s_lshl_b32 s34, s53, 1\ns_add_u32 s34, s34, s57\ns_lshl_b32 s34, s34, 5\nv_and_b32 v5, 31, v1\nv_add_u32 v5, s34, v5\nv_mul_u32_u24 v5, 1792, v5\nv_lshl_add_u32 v248, v6, 4, v5")
    a("s_lshl_b32 s70, s54, 7\ns_lshl_b32 s34, s32, 5\ns_add_u32 s70, s70, s34\ns_add_u32 s71, s70, 896")
    srd(a,44,64,2048*896*2)
    ofr_addr(1)
    for x in ofr(1,144).split("\n"): vm.issue("of",x)
    a("s_waitcnt lgkmcnt(0)\ns_barrier")
    red_read(EX)
    a("v_rcp_f32 v11, v103\ns_nop 0")
    for r in range(7): a(f"v_mul_f32 v{96+r}, v{96+r}, v11")
    a(f"v_mov_b32 v103, {TAG}")
    for j in range(4): a(f"v_cvt_pk_bf16_f32 v{104+j}, v{96+2*j}, v{97+2*j}")
    vm.issue("oa","buffer_store_dwordx4 v[104:107], v8, s[24:27], s59 offen "+CFG["osf"])
    stamp(a,9)
    a("s_cmp_ge_u32 s30, 28\ns_cbranch_scc1 L_FIN")
    if CFG["stop"]=="ATT": a("s_branch L_FIN")
    def tagcmp(F):
        return (f"v_min3_u32 v11, v{F+3}, v{F+7}, v{F+11}\nv_min3_u32 v12, v{F+15}, v{F+19}, v{F+23}\nv_min3_u32 v11, v11, v{F+27}, v{F+31}\nv_min_u32 v11, v11, v12\n"
                f"v_cmp_gt_u32 s[48:49], s42, v11\ns_nop 0")
    def oproj(F):
        def rd(f,fs):
            hl,m=divmod(f,2)
            for nt in range(2):
                for u in range(2): a(f"ds_read_b64_tr_b16 {v(224+8*fs+4*nt+2*u,2)}, v{240+4*nt+2*m+u} offset:{hl*3584}")
        rd(0,0)
        return rd
    def oproj2(F,rd):
        for f in range(8):
            fs=f&1
            if f<7: rd(f+1,fs^1); a("s_waitcnt lgkmcnt(4)")
            else: a("s_waitcnt lgkmcnt(0)")
            a(mfma(32,224+8*fs,F+4*f,"0" if f==0 else None)); a(mfma(48,228+8*fs,F+4*f,"0" if f==0 else None))
    def ostore(so):
        for j in range(4): a(f"v_cvt_pk_bf16_f32 v{104+j}, v{96+2*j}, v{97+2*j}")
        a(f"s_nop 1\nv_permlane32_swap_b32 v104, v106\nv_permlane32_swap_b32 v105, v107\nbuffer_store_dwordx4 v[104:107], v248, s[44:47], s{so} offen")
    a(f"s_mov_b32 s42, {TAG}")
    rd=oproj(144)
    vm.wait("of"); spin(a,tagcmp(144),ofr(1,144))
    oproj2(144,rd)
    ofr_addr(0)
    for r in range(8): a(f"v_subrev_u32 v{240+r}, {WOB-WOA}, v{240+r}")
    a("s_barrier")
    red_write(32,32,2,57,EX)
    a(ofr(0,192))
    a("s_waitcnt lgkmcnt(0)\ns_barrier")
    red_read(EX); ostore(71)
    stamp(a,10)
    rd=oproj(192)
    a("s_waitcnt vmcnt(1)"); spin(a,tagcmp(192),ofr(0,192))
    stamp(a,11)
    oproj2(192,rd)
    a("s_nop 11")
    red_write(32,32,2,57,WOB)
    a("s_waitcnt lgkmcnt(0)\ns_barrier")
    red_read(WOB); ostore(70)
    a("L_FIN:")
    stamp_out(a,12)
    a("L_END:\ns_endpgm")
    a("L_SLOW:"); clr(VM(a)); a("s_waitcnt vmcnt(0)"); f6(None)
    for k in range(14): wodma(k,None)
    if CFG["late"]: special(i1_e,None)
    a("L_S1:\nv_mov_b32 v10, 0xff800000\nv_mov_b32 v11, 0xff800000\ns_mov_b32 s43, 0\nL_S2:\ns_lshl_b32 s42, s43, 15\ns_xor_b32 s42, s42, s70")
    a(f"buffer_load_dwordx4 v[192:195], v8, s[24:27], s42 offen sc1\nbuffer_load_dwordx4 v[196:199], v8, s[24:27], s42 offen offset:1024 sc1\ns_waitcnt vmcnt(0)")
    for qb in range(2):
        a(mfma(S[qb],192,Q[qb],"0")); a(mfma(S[qb],196,Q[qb]+4))
    a("s_nop 15")
    for qb in range(2):
        for r in range(0,16,2): a(f"v_max3_f32 v{10+qb}, v{10+qb}, v{S[qb]+r}, v{S[qb]+r+1}")
    a("s_add_u32 s43, s43, 1\ns_cmp_lg_u32 s43, 16\ns_cbranch_scc1 L_S2")
    a("v_mov_b32 v14, v10\nv_mov_b32 v15, v11\ns_nop 1\nv_permlane32_swap_b32 v10, v14\nv_permlane32_swap_b32 v11, v15")
    a("v_max_f32 v10, v10, v14\nv_max_f32 v11, v11, v15")
    a(f"s_barrier\ns_lshl_b32 s34, s31, 9\ns_add_u32 s34, s34, {EX}\nv_add_u32 v12, s34, v13\nds_write_b32 v12, v10\nds_write_b32 v12, v11 offset:256")
    a(f"s_lshl_b32 s34, s61, 11\ns_add_u32 s34, s34, {EX}\nv_add_u32 v12, s34, v13\ns_waitcnt lgkmcnt(0)\ns_barrier")
    for k in range(4): a(f"ds_read_b32 v{192+k}, v12 offset:{k*512}\nds_read_b32 v{196+k}, v12 offset:{k*512+256}")
    a("s_waitcnt lgkmcnt(0)\ns_barrier")
    for qb in range(2):
        b=192+4*qb
        a(f"v_max3_f32 v{b}, v{b}, v{b+1}, v{b+2}\nv_max_f32 v{10+qb}, v{b}, v{b+3}")
    for r in range(64,96): a(f"v_mov_b32 v{r}, 0")
    a("s_mov_b32 s43, 0\nL_S3:\ns_lshl_b32 s42, s43, 15\ns_xor_b32 s42, s42, s70\ns_lshl_b32 s37, s43, 11\ns_xor_b32 s37, s37, s71")
    a(f"buffer_load_dwordx4 v[192:195], v8, s[24:27], s42 offen sc1\nbuffer_load_dwordx4 v[196:199], v8, s[24:27], s42 offen offset:1024 sc1")
    a(f"buffer_load_dwordx4 v[200:203], v5, s[24:27], s37 offen sc1\nbuffer_load_dwordx4 v[204:207], v5, s[24:27], s37 offen offset:1024 sc1\ns_waitcnt vmcnt(0)")
    for qb in range(2):
        a(mfma(S[qb],192,Q[qb],"0")); a(mfma(S[qb],196,Q[qb]+4))
    a("s_nop 15")
    for qb in range(2):
        for r in range(16): a(f"v_sub_f32 v{S[qb]+r}, v{S[qb]+r}, v{10+qb}")
        for r in range(16): a(e(qb,r))
        a("s_nop 0")
        for j in range(8): a(c(qb,j))
    a("s_nop 1")
    for qb in range(2):
        a(mfma(O[qb],200,P[qb])); a(mfma(O[qb],204,P[qb]+4))
    a("s_add_u32 s43, s43, 1\ns_cmp_lg_u32 s43, 16\ns_cbranch_scc1 L_S3")
    a("s_cmp_lt_u32 s31, 4\ns_cbranch_scc0 L_S4")
    i2_a(None); i2_b(None); i2_c(None); a("s_nop 15"); i2_d(None)
    a("L_S4:"); a(PL3); a("s_waitcnt vmcnt(0)"); spin(a,PC3,PL3); a("s_branch L_TAIL\nL_CEND:")
    return a
def emit(path):
    uid[0]=0
    a=gen(); N="concat_heads__softmax_full_mha__linear_attn_block__prompt_kernel"
    for e_ in check(a.lines,"fused"): print("HAZARD",e_)
    hdr="; generated by work/gen/fused.py (hand-written generator)\n; @launch grid=(256,1,1) block=(512,1,1) lds=163840\n"
    kd=f""".section .rodata,"a"
.p2align 6
.amdhsa_kernel {N}
  .amdhsa_next_free_vgpr 256
  .amdhsa_next_free_sgpr 102
  .amdhsa_accum_offset 256
  .amdhsa_group_segment_fixed_size 0
  .amdhsa_kernarg_size 72
  .amdhsa_user_sgpr_count 2
  .amdhsa_user_sgpr_kernarg_segment_ptr 1
  .amdhsa_system_sgpr_workgroup_id_x 1
.end_amdhsa_kernel
"""
    open(path,"w").write(hdr+'.amdgcn_target "amdgcn-amd-amdhsa--gfx950"\n.text\n'+a.text()+kd)
if __name__=="__main__":
    if "--instr" in sys.argv: INSTR=True
    for x in sys.argv[2:]:
        if "=" in x:
            k,val=x.split("="); CFG[k]=eval(val)
    emit(sys.argv[1])
```

```python
import struct, sys
from asmlib import *
def f2u(x): return struct.unpack("<I",struct.pack("<f",x))[0]
MB=1<<20
TBS=28672
QG=0; KG=2*MB; VF=4*MB; PQG=6*MB; PKT=8*MB; VT=10*MB; OF=12*MB
TBV=4*456*16
KVS=16*MB
CNT=KVS+65536
NRM=16*MB+131072
FL=17*MB
F1=FL; F2=FL+128*128; F6=FL+256*128; F7=FL+512*128
TBK=32768
WS_SIZE=18*MB
EX=0; WOA=49152; WOB=106496
TAG=0x00800000
CFG=dict(ins=(12,17,23,24),rot=1,la=1,fill=(4,6),f6=6,f7=16,cpf=1,p3=22,prio=(16,26,30),stop=None,sleep=4,wo0=2,late=0,wop=2,wos=2,ie=5,pro=0,fs=7,pw=6,psl2=4,pf='sc0 sc1',sf='sc0 sc1',p3f='sc1',p4f='sc1',off='sc1',osf='sc1')
LOG2E=1.4426950408889634
CS=28**-0.5*LOG2E
TH=60.0
SPIN=20000
MF="v_mfma_f32_32x32x16_bf16"
INSTR=False
STAMP=32*MB
def mfma(d,a,b,c=None):
    return f"{MF} {v(d,16)}, {v(a,4)}, {v(b,4)}, {v(d,16) if c is None else c}"
def srd(a,d,base,size):
    a(f"s_mov_b32 s{d}, s{base}\ns_and_b32 s{d+1}, s{base+1}, 0xffff\ns_mov_b32 s{d+2}, {size}\ns_mov_b32 s{d+3}, 0x20000")
class VM:
    def __init__(self,a): self.a=a; self.q=[]; self.done=0
    def issue(self,tag,txt,sp=False): self.a(txt); self.q.append((tag,sp))
    def wait(self,tag,extra=""):
        idx=max(i for i,t in enumerate(self.q) if t[0]==tag)
        sp=self.q[idx][1]
        ns=min(63,len(self.q)-1-idx); nb=min(63,sum(1 for t in self.q[idx+1:] if not t[1]))
        if sp:
            self.a(f"s_waitcnt vmcnt({ns}) {extra}"); return
        if idx<self.done:
            if extra: self.a(f"s_waitcnt {extra}")
            return
        self.done=idx+1
        if ns==nb: self.a(f"s_waitcnt vmcnt({nb}) {extra}")
        else:
            L=lab("W"); self.a(f"s_waitcnt vmcnt({ns}) {extra}\ns_cbranch_vccnz {L}\ns_waitcnt vmcnt({nb})\n{L}:")
    def drop_sp(self):
        nd=sum(1 for t in self.q[:self.done] if not t[1])
        self.q=[t for t in self.q if not t[1]]; self.done=nd
NSTAMP=12
def stamp(a,i,real=False,pst=False):
    if not INSTR: return
    if CFG.get("pst") and 2<i<12 and not pst: return
    if pst and not CFG.get("pst"): return
    a(f"s_memtime s[{72+2*i}:{73+2*i}]")
    if real: a(f"s_memrealtime s[{98+2*(0 if i==0 else 1)}:{99+2*(0 if i==0 else 1)}]")
    a("s_waitcnt lgkmcnt(0)")
def stamp_out(a,n):
    if not INSTR: return
    a("s_waitcnt vmcnt(0)")
    stamp(a,n,True)
    a("s_mov_b64 exec, 1")
    a(f"s_lshl_b32 s62, s2, 3\ns_add_u32 s62, s62, s31\ns_lshl_b32 s62, s62, 7\ns_add_u32 s62, s62, {STAMP}\ns_mov_b32 s26, {64*MB}\nv_mov_b32 v0, 0")
    for i in range(n+1):
        a(f"v_mov_b32 v1, s{72+2*i}\nbuffer_store_dword v1, v0, s[24:27], s62 offen offset:{4*i}")
    a("v_mov_b32 v1, s98\nbuffer_store_dword v1, v0, s[24:27], s62 offen offset:64\nv_mov_b32 v1, s100\nbuffer_store_dword v1, v0, s[24:27], s62 offen offset:68")
uid=[0]
def lab(p):
    uid[0]+=1; return f"L{p}{uid[0]}"
def spin(a, cmp, loads):
    L=lab("P"); D=lab("D")
    a(f"s_mov_b32 s52, {SPIN}\n{L}:\n{cmp}\ns_cmp_eq_u64 s[48:49], 0\ns_cbranch_scc1 {D}\ns_sub_u32 s52, s52, 1\ns_cbranch_scc1 {D}")
    a(f"s_sleep {CFG['sleep']}\n{loads}\ns_waitcnt vmcnt(0)\ns_branch {L}\n{D}:")
def flag_store(a, soff, vm=None, t=14):
    a(f"v_mov_b32 v{t}, s50\nv_mov_b32 v{t+1}, s51\ns_mov_b64 exec, 1")
    x=f"buffer_store_dwordx2 v[{t}:{t+1}], v9, s[24:27], s{soff} offen {CFG['sf']}"
    if vm: vm.issue("flag",x)
    else: a(x)
    a("s_mov_b64 exec, -1")

def gen():
    a=Asm(); N="concat_heads__softmax_full_mha__linear_attn_block__prompt_kernel"
    WB=114688; GR=[[i] for i in range(7)]+[[7+2*i,8+2*i] for i in range(7)]
    a(f".globl {N}\n.p2align 8\n.type {N},@function\n{N}:")
    a("s_cmp_ge_u32 s2, 256\ns_cbranch_scc1 L_END")
    a("s_load_dwordx8 s[4:11], s[0:1], 0\ns_load_dwordx4 s[12:15], s[0:1], 32\ns_load_dwordx4 s[64:67], s[0:1], 48\ns_load_dwordx2 s[68:69], s[0:1], 64\ns_memrealtime s[50:51]")
    stamp(a,0,True)
    a("v_lshrrev_b32 v2, 6, v0\nv_and_b32 v1, 63, v0\ns_and_b32 s32, s2, 7\ns_lshr_b32 s30, s2, 3")
    a("v_readfirstlane_b32 s31, v2")
    a("s_mul_i32 s34, s30, 37\ns_lshr_b32 s34, s34, 8")
    a("s_mul_i32 s35, s34, 7\ns_sub_u32 s54, s30, s35")
    a("s_lshl_b32 s33, s32, 2\ns_add_u32 s53, s33, s34")
    a("s_and_b32 s28, s32, 1\ns_lshr_b32 s33, s32, 1\ns_lshl_b32 s33, s33, 2\ns_add_u32 s58, s33, s34")
    a("s_and_b32 s60, s31, 3\ns_lshr_b32 s61, s31, 2\ns_and_b32 s57, s31, 1")
    if CFG["rot"]==1:
        a("s_lshl_b32 s35, s34, 1\ns_add_u32 s35, s35, s54\ns_cmp_ge_u32 s35, 7\ns_cselect_b32 s36, 7, 0\ns_sub_u32 s35, s35, s36\ns_cmp_ge_u32 s35, 7\ns_cselect_b32 s36, 7, 0\ns_sub_u32 s40, s35, s36")
    elif CFG["rot"]==2: a("s_mov_b32 s40, s34")
    elif CFG["rot"]==3: a("s_mov_b32 s40, s54")
    else: a("s_mov_b32 s40, 0")
    a("v_lshrrev_b32 v5, 3, v1\nv_and_b32 v6, 7, v1\nv_lshrrev_b32 v11, 1, v5\nv_xor_b32 v12, v6, v11")
    a("s_lshl_b32 s34, s58, 7\ns_lshl_b32 s33, s60, 5\ns_add_u32 s34, s34, s33\nv_add_u32 v10, s34, v5\nv_mul_u32_u24 v10, 896, v10")
    a("v_lshl_add_u32 v96, v12, 4, v10\nv_xor_b32 v12, 4, v12\nv_lshl_add_u32 v97, v12, 4, v10\nv_add_u32 v97, 7168, v97\nv_add_u32 v98, 14336, v96\nv_add_u32 v99, 14336, v97")
    a("s_lshl_b32 s35, s60, 4\nv_add_u32 v7, s35, v5\nv_mul_u32_u24 v10, 2688, v7\nv_and_b32 v11, 1, v11\nv_lshlrev_b32 v11, 2, v11\nv_xor_b32 v11, v6, v11\nv_lshl_add_u32 v3, v11, 4, v10")
    a("s_lshl_b32 s34, s54, 7\nv_add_u32 v3, s34, v3\ns_lshl_b32 s36, s31, 10\ns_lshl_b32 s37, s60, 12\ns_lshl_b32 s59, s60, 11")
    a("s_lshl_b32 s35, s31, 3\nv_add_u32 v7, s35, v5\nv_mul_u32_u24 v10, 896, v7\nv_lshl_add_u32 v4, v11, 4, v10\nv_add_u32 v4, s34, v4")
    a("v_lshlrev_b32 v8, 4, v1\nv_mov_b32 v9, 0\nv_lshlrev_b32 v13, 2, v1")
    a("s_waitcnt lgkmcnt(0)")
    a("s_cmp_eq_u32 s28, 0\ns_cselect_b32 s4, s4, s10\ns_cselect_b32 s5, s5, s11\ns_cselect_b32 s6, s6, s12\ns_cselect_b32 s7, s7, s13")
    a("s_movk_i32 s41, 896\ns_movk_i32 s42, 1792\ns_mov_b32 s43, 0")
    srd(a,16,4,2048*448*2); srd(a,20,6,448*1344*2)
    vm=VM(a)
    def dma(u):
        part,i7=divmod(u,7)
        a(f"s_lshl_b32 s38, s40, 7\ns_mul_i32 s39, s40, 172032\ns_add_u32 s40, s40, 1\ns_cmp_eq_u32 s40, 7\ns_cselect_b32 s40, 0, s40")
        for i in range(2):
            a(f"s_add_u32 m0, s59, {WB+(u%6)*8192+i*1024}\ns_add_u32 s39, s39, {f's{41+part}' if i==0 else 21504}")
            vm.issue(("d",u),"buffer_load_dwordx4 v3, s[20:23], s39 offen lds")
        if part==0:
            for i in range(4):
                a(f"s_add_u32 m0, s37, {u*16384+i*1024}\ns_nop 0")
                vm.issue(("d",u),f"buffer_load_dwordx4 v{96+i}, s[16:19], s38 offen lds")
    a("s_cmp_ge_u32 s30, 28\ns_cbranch_scc1 L_A0\ns_cmp_lt_u32 s31, 4\ns_cbranch_scc1 L_A0")
    dma(0)
    a("L_A0:")
    srd(a,24,68,WS_SIZE); srd(a,44,66,256)
    a("s_and_b32 s55, s30, 1\ns_lshl_b32 s33, s32, 1\ns_add_u32 s55, s55, s33\ns_lshr_b32 s56, s30, 1")
    a("s_mul_i32 s33, s55, 7\ns_lshr_b32 s29, s33, 1\ns_lshl_b32 s29, s29, 9")
    a("s_lshl_b32 s34, s61, 3\ns_add_u32 s34, s34, s56\ns_and_b32 s34, s34, 15\ns_lshl_b32 s35, s60, 4\ns_add_u32 s34, s34, s35")
    a(f"s_lshl_b32 s70, s34, 15\ns_add_u32 s70, s70, s29\ns_add_u32 s70, s70, {KG}")
    a(f"s_lshl_b32 s71, s55, 6\ns_add_u32 s71, s71, s34\ns_lshl_b32 s71, s71, 11\ns_add_u32 s71, s71, {VF}")
    a(f"s_lshr_b32 s34, s33, 4\ns_add_u32 s35, s33, 6\ns_lshr_b32 s35, s35, 4\ns_sub_u32 s35, s35, s34\ns_lshl_b32 s34, s34, 11\ns_add_u32 s34, s34, {F7}\ns_lshl_b32 s35, s35, 11")
    a(f"v_and_b32 v10, 15, v1\nv_lshlrev_b32 v10, 7, v10\nv_bfe_u32 v11, v1, 4, 1\nv_mul_u32_u24 v11, s35, v11\nv_add3_u32 v158, v10, v11, s34")
    a(f"s_add_u32 s34, s34, {8<<11}\ns_lshl_b32 s35, s56, 7\ns_add_u32 s35, s35, s34\ns_lshl_b32 s33, s55, 7\ns_add_u32 s34, s34, s33")
    a("s_cmp_eq_u32 s31, 7\ns_cselect_b32 exec_hi, -1, 0\ns_mov_b32 exec_lo, 0\nv_add_u32 v158, s35, v11")
    a("s_cselect_b32 exec_lo, -1, 0\ns_mov_b32 exec_hi, 0\nv_mov_b32 v158, s34\ns_mov_b64 exec, -1")
    a(f"s_lshr_b32 s34, s53, 1\ns_and_b32 s34, s34, 15\ns_lshl_b32 s34, s34, 10\ns_add_u32 s34, s34, {F6}\nv_add_u32 v0, s34, v8")
    a("s_or_b32 s50, s50, 1\ns_lshl_b32 s34, s2, 3\ns_add_u32 s34, s34, s31\ns_cmp_lg_u32 s34, 2040\ns_cbranch_scc1 L_NN")
    a("v_mov_b32 v6, s50\nv_mov_b32 v7, s51\ns_mov_b64 exec, 1\nbuffer_store_dwordx2 v[6:7], v9, s[44:47], 0 offen sc1\ns_mov_b64 exec, -1\nL_NN:")
    a("s_cmp_ge_u32 s30, 28\ns_cbranch_scc1 L_IDLE\ns_cmp_lt_u32 s31, 4\ns_cbranch_scc1 L_CMP")
    def NONCE():
        L=lab("N"); D=lab("N")
        return (f"v_readfirstlane_b32 s50, v156\nv_readfirstlane_b32 s51, v157\ns_mov_b32 s52, {SPIN}\n{L}:\ns_cmp_lg_u32 s50, 0\ns_cbranch_scc1 {D}\ns_sub_u32 s52, s52, 1\ns_cmp_eq_u32 s52, 0\ns_cbranch_scc1 {D}\n"
          f"buffer_load_dwordx2 v[156:157], v9, s[44:47], 0 offen sc1\ns_waitcnt vmcnt(0)\nv_readfirstlane_b32 s50, v156\nv_readfirstlane_b32 s51, v157\ns_branch {L}\n{D}:")
    def get_nonce(): a(NONCE())
    nxt=1
    for g,grp in enumerate(GR):
        lim=min(20, grp[-1]+(CFG["la"] if g<6 else 2), (GR[g-2][-1] if g>=2 else -1)+6)
        while nxt<=lim: dma(nxt); nxt+=1
        if g==0: stamp(a,1)
        vm.wait(("d",grp[-1]))
        if 0<g<7: stamp(a,2+g,pst=True)
        a("s_barrier")
        if g==0: stamp(a,2)
    stamp(a,3); stamp(a,9,pst=True)
    a("buffer_load_dwordx2 v[156:157], v9, s[44:47], 0 offen sc1\ns_waitcnt vmcnt(0)"); get_nonce()
    srd(a,16,8,448*448*2); srd(a,20,14,448*448*2)
    if CFG["wop"]<2: a("s_and_b32 s34, s31, 1\ns_lshl_b32 s35, s34, 2\ns_sub_u32 s35, s31, s35\ns_mul_i32 s35, s35, 7168\nv_subrev_u32 v4, s35, v4\ns_lshl_b32 s36, s34, 12")
    a("s_barrier")
    stamp(a,4); stamp(a,5)
    if CFG.get("lsl",0): a(f"s_cmp_lt_u32 s31, 6\ns_cbranch_scc1 L_WO\ns_sleep {CFG['lsl']}\nL_WO:")
    def wo_loop():
        for p in range(2):
            a(f"s_add_u32 s33, s36, {WOA if p else WOB}\ns_mov_b32 s43, 0\nL_WO{p}:")
            for g in range(4):
                a(f"s_add_u32 m0, s33, {g*1024}\ns_add_u32 s42, s43, {g*7168}\nbuffer_load_dwordx4 v4, s[{20-4*p}:{23-4*p}], s42 offen lds")
            a(f"s_add_u32 s33, s33, 8192\ns_add_u32 s43, s43, {64*896}\ns_cmp_lg_u32 s43, {7*64*896}\ns_cbranch_scc1 L_WO{p}")
    if CFG["wop"]==0:
        a("s_cmp_ge_u32 s31, 6\ns_cbranch_scc1 L_ATT"); wo_loop()
    a("s_branch L_ATT")
    a("L_CMP:")
    a(f"s_lshl_b32 s41, s58, 2\ns_add_u32 s41, s41, s60")
    a("s_lshl_b32 s34, s54, 4\ns_add_u32 s35, s34, 22\ns_add_u32 s34, s34, 6\ns_mul_i32 s34, s34, 9363\ns_lshr_b32 s34, s34, 16\ns_mul_i32 s35, s35, 9363\ns_lshr_b32 s35, s35, 16\ns_sub_u32 s35, s35, s34")
    for r in range(4): a(f"v_mov_b32 v{16+r}, 0\nv_mov_b32 v{20+r}, 0x3f803f80")
    a("v_lshrrev_b32 v5, 4, v1\nv_lshlrev_b32 v5, 17, v5\nv_bfe_u32 v6, v1, 2, 2\nv_lshl_add_u32 v5, v6, 9, v5\nv_and_b32 v6, 3, v1\nv_lshl_add_u32 v5, v6, 4, v5")
    a(f"v_mul_u32_u24 v6, 7296, v1\ns_lshl_b32 s38, s34, 17\ns_lshl_b32 s39, s41, 11\ns_add_u32 s38, s38, s39\ns_add_u32 s38, s38, {VF+448}")
    a(f"s_mul_i32 s39, s41, {TBV}\ns_lshl_b32 s42, s54, 4\ns_add_u32 s39, s39, s42\ns_add_u32 s39, s39, {VT+7168}")
    a("s_cmp_eq_u32 s35, 3\ns_cselect_b32 s49, 0xffff, 0\ns_cmp_eq_u32 s28, 0\ns_cselect_b32 s38, s38, s39\ns_cselect_b32 s48, -1, 15\ns_cselect_b32 s49, s49, 0\ns_cselect_b64 s[42:43], -1, 0")
    a("v_cndmask_b32 v5, v6, v5, s[42:43]\ns_mov_b64 exec, s[48:49]")
    a("buffer_store_dwordx4 v[20:23], v5, s[24:27], s38 offen sc1")
    a(f"s_mov_b64 exec, -1\ns_add_u32 s34, s34, s60\ns_cmp_lt_u32 s60, s35\ns_cselect_b32 s38, s28, 0\ns_cmp_eq_u32 s34, s58\ns_cselect_b32 s38, s38, 0\ns_cmp_eq_u32 s38, 0\ns_cbranch_scc1 L_NZ")
    a(f"s_lshl_b32 s38, s34, 12\ns_add_u32 s38, s38, {KVS}\ns_lshl_b32 s39, s34, 7\ns_add_u32 s39, s39, {CNT}")
    for k in range(4): a(f"buffer_store_dwordx4 v[16:19], v8, s[24:27], s38 offen offset:{k*1024} sc1")
    a("s_mov_b64 exec, 1\nbuffer_store_dwordx4 v[16:19], v9, s[24:27], s39 offen sc1\ns_mov_b64 exec, -1\nL_NZ:")
    a("s_lshr_b32 s43, s31, 1\ns_lshl_b32 s41, s58, 1\ns_add_u32 s41, s41, s57\ns_lshl_b32 s41, s41, 1\ns_lshl_b32 s42, s54, 1\ns_add_u32 s42, s42, s43")
    a("v_and_b32 v5, 31, v1\nv_lshrrev_b32 v6, 5, v1\ns_lshl_b32 s34, s57, 6\nv_add_u32 v7, s34, v5")
    a("v_bfe_u32 v10, v7, 1, 3\nv_xor_b32 v10, v10, v6\nv_lshlrev_b32 v7, 7, v7")
    for ks in range(4):
        a(f"v_xor_b32 v11, {2*ks}, v10\nv_lshl_add_u32 v{160+ks}, v11, 4, v7\nv_add_u32 v{165+ks}, 65536, v{160+ks}")
    a("v_bfe_u32 v7, v1, 2, 2\nv_lshl_add_u32 v10, v6, 3, v7\nv_lshlrev_b32 v10, 7, v10")
    a("v_bfe_u32 v11, v1, 4, 1\nv_lshlrev_b32 v11, 5, v11\nv_and_b32 v12, 3, v1\nv_lshl_add_u32 v11, v12, 3, v11")
    a("s_lshl_b32 s34, s43, 6\nv_add_u32 v11, s34, v11\nv_lshrrev_b32 v7, 1, v7\nv_lshlrev_b32 v7, 6, v7\nv_xor_b32 v11, v11, v7")
    a(f"s_mov_b32 s34, {WB}\nv_add3_u32 v164, v10, v11, s34")
    a(f"s_cmp_eq_u32 s28, 0\ns_cselect_b32 s34, 0, {f2u(1e-6)}")
    for r in range(16,80): a(f"v_mov_b32 v{r}, s34")
    a("s_lshl_b32 s34, s42, 5\nv_add_u32 v152, s34, v5\nv_mul_u32_u24 v10, 2341, v152\nv_lshrrev_b32 v10, 16, v10")
    a("v_mul_u32_u24 v11, 28, v10\nv_sub_u32 v11, v152, v11\nv_lshlrev_b32 v10, 17, v10\nv_lshl_add_u32 v10, v11, 4, v10\nv_lshl_add_u32 v153, v6, 9, v10")
    a("v_mul_u32_u24 v10, 7168, v6\nv_lshl_add_u32 v154, v152, 4, v10\nv_lshl_add_u32 v155, v6, 7, v154\nv_lshlrev_b32 v159, 2, v6")
    a("buffer_load_dwordx2 v[156:157], v9, s[44:47], 0 offen sc1")
    def rdl(k):
        u,ks=divmod(k,4); sl=u%7
        X=112+12*(k%3); W=X+8; xa=(160 if sl<4 else 165)+ks
        w=lambda uu: f"ds_read_b64_tr_b16 {v(W+2*uu,2)}, v164 offset:{(u%6)*8192+ks*2048+uu*512}"
        return [w(0),w(1),f"ds_read_b128 {v(X,4)}, v{xa} offset:{(sl%4)*16384}",f"ds_read_b128 {v(X+4,4)}, v{xa} offset:{(sl%4)*16384+4096}"]
    def swp(P): return [f"v_permlane32_swap_b32 v{P}, v{P+2}",f"v_permlane32_swap_b32 v{P+1}, v{P+3}",f"v_permlane32_swap_b32 v{P+4}, v{P+6}",f"v_permlane32_swap_b32 v{P+5}, v{P+7}"]
    def cvt(d,s_,n=8): return [f"v_cvt_pk_bf16_f32 v{d+j}, v{s_+2*j}, v{s_+1+2*j}" for j in range(n)]
    first={g[0] for g in GR}
    def mainloop(p,fills):
        stamp(a,1)
        a("s_barrier")
        stamp(a,2)
        for x in rdl(0)+rdl(1): a(x)
        for k in range(84):
            u,ks=divmod(k,4); part=u//7; X=112+12*(k%3); W=X+8; col=(part+1)%3; A=16+32*col
            z="0" if (col==2 and k%28==0) else None
            tr=(col==2) or (col==1 and p==1)
            mm=[mfma(A+16*t,X+4*t,W,z) if tr else mfma(A+16*t,W,X+4*t) for t in range(2)]
            nx=rdl(k+2) if k+2<84 else []
            bar=nx and (k+2)%4==0 and (k+2)//4 in first
            a(f"s_waitcnt lgkmcnt({0 if (bar or k==83) else 4})")
            if bar:
                if (k+2)//4<7: stamp(a,2+(k+2)//4,pst=True)
                a("s_barrier")
            f=fills[part-1] if part>0 and k%28>=2 else []
            n=CFG["fill"][p]
            a(mm[0])
            for x in nx[:2]: a(x)
            for x in f[:(n+1)//2]: a(x)
            del f[:(n+1)//2]
            a(mm[1])
            for x in nx[2:]: a(x)
            for x in f[:n//2]: a(x)
            del f[:n//2]
            if k%28==27:
                for x in f: a(x)
                del f[:]
        stamp(a,3); stamp(a,9,pst=True)
        L=lab("E")
        a(f"s_lshl_b32 s62, s28, 3\ns_add_u32 s62, s62, s54\ns_lshl_b32 s62, s62, 4\ns_add_u32 s62, s62, s58\ns_lshl_b32 s62, s62, 7\ns_add_u32 s63, s62, {F7}\ns_add_u32 s62, s62, {F1}")
        a("s_waitcnt vmcnt(0)"); get_nonce()
        a(f"s_barrier\ns_cmp_lg_u32 s31, 0\ns_cbranch_scc1 {L}")
        flag_store(a,63); a(f"{L}:")
        a("s_nop 3")
        for x in fills[2]: a(x)
    ST="buffer_store_dwordx4 {}, v{}, s[24:27], s{} offen offset:{} sc1"
    a("s_cmp_eq_u32 s28, 0\ns_cbranch_scc0 L_PB")
    a(f"s_mov_b32 s34, {f2u(CS)}\ns_lshl_b32 s35, s41, 15\ns_lshl_b32 s37, s42, 11\ns_add_u32 s35, s35, s37\ns_add_u32 s35, s35, {KG}\ns_lshl_b32 s37, s41, 11\ns_add_u32 s37, s37, {VF}")
    a(f"s_lshl_b32 s38, s42, 6\ns_add_u32 s38, s38, s41\ns_lshl_b32 s38, s38, 2\ns_add_u32 s38, s38, {NRM}")
    def qk_epi(A,scale,noff,last):
        f=[]
        for t in range(2):
            T=176+8*t
            if scale: f+=[f"v_mul_f32 v{A+16*t+r}, s34, v{A+16*t+r}" for r in range(16)]
            f+=cvt(T,A+16*t)+[f"v_mul_f32 v{170+t}, v{A+16*t}, v{A+16*t}",f"v_fmac_f32 v{170+t}, v{A+16*t+1}, v{A+16*t+1}"]+swp(T)
            f+=[ST.format(v(T,4),8,35,0),ST.format(v(T+4,4),8,35,1024)+f"\ns_add_u32 s35, s35, {TBK if t==0 else last}"]
        for r in range(2,16): f+=[f"v_fmac_f32 v170, v{A+r}, v{A+r}",f"v_fmac_f32 v171, v{A+16+r}, v{A+16+r}"]
        f+=["s_nop 1\nv_permlane32_swap_b32 v170, v171\nv_add_f32 v170, v170, v171"]
        for m in ("quad_perm:[1,0,3,2]","quad_perm:[2,3,0,1]","row_half_mirror","row_mirror","row_bcast:15"):
            f+=[f"s_nop 1\nv_max_f32_dpp v170, v170, v170 {m} row_mask:{'0xa' if 'bcast' in m else '0xf'} bank_mask:0xf"]
        f+=[f"s_mov_b32 exec_lo, 0x80000000\ns_mov_b32 exec_hi, 0x80000000\nbuffer_store_dword v170, v159, s[24:27], s38 offen offset:{noff} sc1\ns_mov_b64 exec, -1"]
        return f
    fv=cvt(192,80)+[ST.format(v(192,4),153,37,0),ST.format(v(196,4),153,37,1024)]+cvt(200,96)+[ST.format(v(200,4),153,37,2048),ST.format(v(204,4),153,37,3072)]
    mainloop(0,[qk_epi(48,False,3584,(-KG-TBK)&0xffffffff),fv,qk_epi(16,True,0,0)])
    a("s_branch L_PE")
    a("L_PB:")
    a(f"s_mov_b32 s34, {f2u(LOG2E)}\nv_mov_b32 v170, {f2u(-1e-6*LOG2E)}\nv_mov_b32 v171, {f2u(1e-6)}")
    a(f"s_mul_i32 s43, s41, {TBS}\ns_add_u32 s35, s43, {PKT}\ns_lshl_b32 s37, s42, 11\ns_add_u32 s37, s37, s43\ns_add_u32 s37, s37, {PQG}\ns_mul_i32 s39, s41, {TBV}\ns_add_u32 s39, s39, {VT}")
    def phi(base,tmp,dst):
        f=[f"v_fma_f32 v{tmp+r}, v{base+r}, s34, v170" for r in range(16)]
        for r in range(16): f+=[f"v_exp_f32 v{tmp+r}, v{tmp+r} clamp",f"v_max_f32 v{base+r}, v{base+r}, v171"]
        return f+[f"v_add_f32 v{base+r}, v{base+r}, v{tmp+r}" for r in range(16)]+cvt(dst,base)
    fq=[]; fk=[]; fv=[]
    for t in range(2):
        T=192+8*t
        fq+=phi(16+16*t,176,T)+["s_nop 0"]+swp(T)+[ST.format(v(T,4),8,37,0),ST.format(v(T+4,4),8,37,1024)+f"\ns_add_u32 s37, s37, {TBS}"]
        fk+=phi(48+16*t,176,T)+[ST.format(v(T+4*m,4),154,35,0)+"\ns_add_u32 s35, s35, 14336" for m in range(2)]
        fv+=cvt(208+8*t,80+16*t)+[ST.format(v(208+8*t+4*m,4),155,39,0)+"\ns_add_u32 s39, s39, 14592" for m in range(2)]
    mainloop(1,[fk,fv,fq])
    a("L_PE:")
    stamp(a,4); stamp(a,10,pst=True)
    L=lab("F")
    a("s_waitcnt vmcnt(0)")
    a(f"s_lshl_b32 s35, s31, 2\nv_mov_b32 v10, 0\nv_add_u32 v11, s35, v10\nv_mov_b32 v14, s50\nds_write_b32 v11, v14\ns_waitcnt lgkmcnt(0)\nds_read_b128 v[16:19], v10\ns_waitcnt lgkmcnt(0)")
    a(f"v_xor_b32 v16, v16, v14\nv_xor_b32 v17, v17, v14\nv_xor_b32 v18, v18, v14\nv_xor_b32 v19, v19, v14\nv_or3_b32 v16, v16, v17, v18\nv_or_b32 v16, v16, v19\ns_nop 0\nv_readfirstlane_b32 s35, v16\ns_nop 0")
    a(f"s_cmp_lg_u32 s35, 0\ns_cbranch_scc1 {L}")
    flag_store(a,62); a(f"{L}:")
    stamp(a,5); stamp(a,11,pst=True)
    a("s_branch L_ATT")
    a("L_IDLE:\ns_sub_u32 s34, s30, 28\ns_lshl_b32 s34, s34, 3\ns_add_u32 s34, s34, s31")
    if CFG["cpf"]:
        a(f"s_getpc_b64 s[38:39]\nL_PC:\ns_sub_u32 s38, s38, L_PC-{N}\ns_subb_u32 s39, s39, 0\ns_lshl_b32 s35, s34, 10\nv_add_u32 v16, s35, v8")
        for k in range(2):
            a(f"v_min_u32 v17, L_CEND-{N}-16, v16\nv_mov_b32 v19, s39\nv_add_co_u32 v18, vcc, s38, v17\ns_nop 1\nv_addc_co_u32 v19, vcc, 0, v19, vcc\nglobal_load_dwordx4 v[{24+4*k}:{27+4*k}], v[18:19], off\nv_add_u32 v16, 32768, v16")
    a("buffer_load_dwordx2 v[156:157], v9, s[44:47], 0 offen sc1\ns_mul_i32 s34, s34, 13312")
    srd(a,16,8,448*448*2); srd(a,20,14,448*448*2)
    for k in range(13):
        a(f"buffer_load_dwordx4 v[16:19], v8, s[16:19], s34 offen\nbuffer_load_dwordx4 v[20:23], v8, s[20:23], s34 offen\ns_add_u32 s34, s34, 1024")
    stamp(a,1); a("s_waitcnt vmcnt(0)"); get_nonce()
    stamp(a,2); stamp(a,3); stamp(a,4); stamp(a,5)
    a("L_ATT:")
    vm=VM(a)
    Q=[16,24]; O=[64,80]; S=[96,112]; P=[128,136]; R=192
    PL1="buffer_load_dwordx2 v[10:11], v158, s[24:27], 0 offen sc1"
    PC1="v_cmp_ne_u64 s[48:49], s[50:51], v[10:11]\ns_nop 0"
    PL3="buffer_load_dwordx4 v[32:35], v0, s[24:27], 0 offen "+CFG["p3f"]
    PC3="v_cmp_ne_u64 s[48:49], s[50:51], v[32:33]\nv_cmp_ne_u64 s[34:35], s[50:51], v[34:35]\ns_nop 0\ns_or_b64 s[48:49], s[48:49], s[34:35]"
    def ld(vm,kind,kt):
        kt0=kt
        base=R+16*(kt%4)+(0 if kind=="K" else 8)
        if CFG.get("nokv") and kt>=4: kt=kt%4
        a(f"s_xor_b32 s42, s70, {kt*TBK}" if kind=="K" else f"s_xor_b32 s42, s71, {kt*2048}")
        kt=kt0
        for m in range(2):
            vm.issue((kind,kt),f"buffer_load_dwordx4 {v(base+4*m,4)}, v{8 if kind=='K' else 5}, s[24:27], s42 offen offset:{m*1024} {CFG.get('kvf','sc1')}")
    def W(vmx,tag):
        if vmx: vmx.wait(tag)
        else: a("s_waitcnt vmcnt(0)")
    def I(vmx,tag,txt):
        if vmx: vmx.issue(tag,txt,True)
        else: a(txt)
    def i1_a(vmx):
        a("s_mul_i32 s33, s55, 7\ns_lshr_b32 s34, s33, 4\ns_add_u32 s34, s34, 448")
        a("v_and_b32 v3, 19, v1\nv_bfe_u32 v2, v1, 2, 1\nv_lshl_add_u32 v3, v2, 3, v3\nv_bfe_u32 v2, v1, 3, 1\nv_lshl_add_u32 v3, v2, 2, v3")
        a("v_lshrrev_b32 v5, 5, v1\nv_mul_u32_u24 v6, 7168, v5\nv_lshl_add_u32 v3, v3, 4, v6\nv_lshl_add_u32 v6, v5, 7, v6")
        a("v_and_b32 v5, 31, v1\nv_add_u32 v7, 20, v5\nv_lshrrev_b32 v7, 5, v7\nv_sub_u32 v2, v5, v7\nv_lshrrev_b32 v7, 4, v5\nv_sub_u32 v2, v2, v7\nv_add_u32 v7, 4, v5\nv_lshrrev_b32 v7, 5, v7\nv_sub_u32 v2, v2, v7")
        a("s_lshl_b32 s33, s33, 2\nv_add_u32 v2, s33, v2\nv_and_b32 v5, 11, v5\nv_cmp_eq_u32 s[48:49], 11, v5\nv_mov_b32 v7, s34\ns_nop 0\nv_cndmask_b32 v2, v2, v7, s[48:49]")
        a("v_lshl_add_u32 v2, v2, 4, v6")
    def i1_b(vmx):
        a(f"s_mul_i32 s34, s56, {4*TBS}\ns_lshr_b32 s35, s29, 2\ns_add_u32 s34, s34, s35\ns_add_u32 s34, s34, {PKT}\ns_mul_i32 s35, s56, {4*TBV}\ns_add_u32 s35, s35, {VT}")
        for i in range(8):
            I(vmx,"pay",f"buffer_load_dwordx4 {v(32+4*i,4)}, v3, s[24:27], s34 offen sc1")
            I(vmx,"pay",f"buffer_load_dwordx4 {v(144+4*i,4)}, v2, s[24:27], s35 offen sc1")
            if i<7: a("s_add_u32 s34, s34, 14336\ns_add_u32 s35, s35, 14592")
    def i1_c(vmx):
        W(vmx,"pay")
        for i in range(8): a(mfma(176,32+4*i,144+4*i,"0" if i==0 else None))
    def i1_d(vmx):
        a(f"s_lshl_b32 s42, s55, 12\ns_add_u32 s42, s42, {KVS}")
        for r in range(16): I(vmx,"at",f"buffer_atomic_add_f32 v{176+r}, v13, s[24:27], s42 offen offset:{r*256}")
    def i1_e(vmx):
        if CFG["late"]: W(vmx,"at")
        a(f"s_lshl_b32 s42, s55, 7\ns_add_u32 s42, s42, {CNT}\nv_mov_b32 v7, 1\ns_mov_b64 exec, 1")
        I(vmx,"cn","buffer_atomic_add v7, v9, s[24:27], s42 offen"); a("s_mov_b64 exec, -1")
    PL4="buffer_load_dword v14, v9, s[24:27], s33 offen "+CFG["p4f"]+"\nbuffer_load_dwordx2 v[6:7], v10, s[24:27], 0 offen "+CFG["p4f"]
    def i2_a(vmx):
        a(f"s_mul_i32 s33, s55, 7\ns_lshr_b32 s34, s33, 4\ns_add_u32 s35, s33, 6\ns_lshr_b32 s35, s35, 4\ns_sub_u32 s35, s35, s34\ns_lshl_b32 s35, s35, 11")
        a(f"s_lshl_b32 s34, s34, 11\ns_lshl_b32 s33, s56, {CFG['fs']}\ns_add_u32 s34, s34, s33\ns_add_u32 s34, s34, {F2}\nv_and_b32 v10, 1, v1\nv_mul_u32_u24 v10, s35, v10\nv_add_u32 v10, s34, v10")
        a(f"s_lshl_b32 s33, s55, 7\ns_add_u32 s33, s33, {CNT}")
        for x in PL4.split("\n"): I(vmx,"p4",x)
    def i2_b(vmx):
        W(vmx,"p4"); spin(a,"v_cmp_gt_u32 s[48:49], 16, v14\nv_cmp_ne_u64 s[34:35], s[50:51], v[6:7]\ns_nop 0\ns_or_b64 s[48:49], s[48:49], s[34:35]",PL4)
        a(f"s_lshl_b32 s34, s55, 12\ns_add_u32 s34, s34, {KVS}\ns_lshl_b32 s35, s56, 2\ns_add_u32 s35, s35, s60\ns_mul_i32 s35, s35, {TBS}\ns_add_u32 s35, s35, s29\ns_add_u32 s35, s35, {PQG}")
        for r in range(16): I(vmx,"kv",f"buffer_load_dword v{144+r}, v13, s[24:27], s34 offen offset:{r*256} sc1")
        for m in range(2): I(vmx,"kv",f"buffer_load_dwordx4 {v(168+4*m,4)}, v8, s[24:27], s35 offen offset:{m*1024} sc1")
    def qmask(b):
        a(f"v_cndmask_b32 v{b}, v{b}, 0, s[38:39]\nv_cndmask_b32 v{b+1}, v{b+1}, 0, s[38:39]\nv_cndmask_b32 v{b+6}, v{b+6}, 0, s[40:41]\nv_cndmask_b32 v{b+7}, v{b+7}, 0, s[40:41]")
    def i2_c(vmx):
        W(vmx,"kv")
        for j in range(8): a(f"v_cvt_pk_bf16_f32 v{160+j}, v{144+2*j}, v{145+2*j}")
        qmask(168); a("s_nop 1")
        a(mfma(176,160,168,"0")); a(mfma(176,164,172))
    def i2_d(vmx):
        a(f"v_add_f32 v15, {f2u(1e-6)}, v183\nv_rcp_f32 v15, v15\ns_nop 0")
        for r in range(16): a(f"v_mul_f32 v{176+r}, v{176+r}, v15" if r%8!=7 else f"v_mov_b32 v{176+r}, {TAG}")
        for j in range(8): a(f"v_cvt_pk_bf16_f32 v{160+j}, v{176+2*j}, v{177+2*j}")
        for m in range(2): I(vmx,"ob",f"buffer_store_dwordx4 {v(160+4*m,4)}, v8, s[24:27], s58 offen offset:{m*1024} {CFG['osf']}")
    def f6(vmx):
        a(f"s_lshl_b32 s34, s56, 4\ns_add_u32 s34, s34, s55\ns_lshl_b32 s34, s34, 3\ns_add_u32 s34, s34, s31\ns_lshl_b32 s34, s34, 3\ns_add_u32 s34, s34, {F6}")
        if vmx: vmx.wait("clr")
        flag_store(a,34,vmx)
    def special(f,vmx):
        L=lab("S"); a(f"s_cbranch_vccz {L}"); f(vmx); a(f"{L}:")
    def ofr(p,F):
        return "\n".join(f"buffer_load_dwordx4 {v(F+4*f,4)}, v8, s[24:27], s{62+f//4} offen offset:{(f%4)*1024} {CFG['off']}" for f in range(8))
    def ofr_addr(p):
        a(f"s_lshl_b32 s62, s53, 1\ns_add_u32 s62, s62, s57\ns_lshl_b32 s62, s62, 2\ns_lshr_b32 s63, s31, 1\ns_add_u32 s62, s62, s63\ns_lshl_b32 s62, s62, 13\ns_add_u32 s62, s62, {OF+p*2*MB}\ns_add_u32 s63, s62, 4096")
    if CFG.get("ep",1): a("s_setprio 3")
    if CFG["wop"]==2: srd(a,16,8,448*448*2); srd(a,20,14,448*448*2)
    def wodma(k,vmx):
        p,j=divmod(k,7); b=(WOA if p else WOB)+j*8192
        a(f"s_add_u32 m0, s36, {b}\ns_mov_b32 s43, {j*64*896}")
        x=f"buffer_load_dwordx4 v4, s[{20-4*p}:{23-4*p}], s43 offen lds"
        if vmx: vmx.issue("wo",x)
        else: a(x)
    a("s_cmp_eq_u32 s31, 7\ns_cselect_b64 vcc, -1, 0")
    a(f"v_and_b32 v2, 1, v1\nv_lshlrev_b32 v2, 4, v2\ns_lshl_b32 s34, s56, 7\ns_add_u32 s34, s34, {(F1-F7)&0xffffffff}\nv_readlane_b32 s35, v158, 0\nv_readlane_b32 s33, v158, 16\ns_nop 0\ns_sub_u32 s33, s33, s35\ns_add_u32 s34, s34, s35\nv_lshrrev_b32 v2, 4, v2\nv_mul_u32_u24 v2, s33, v2\nv_add_u32 v2, s34, v2")
    special(i1_a,vm)
    a("s_lshl_b32 s34, s56, 2\ns_lshl_b32 s35, s61, 1\ns_add_u32 s34, s34, s35\ns_lshr_b32 s35, s60, 1\ns_add_u32 s34, s34, s35\ns_lshl_b32 s34, s34, 4\ns_add_u32 s34, s34, s55")
    a(f"s_lshl_b32 s34, s34, 1\ns_and_b32 s35, s60, 1\ns_add_u32 s34, s34, s35\ns_lshl_b32 s34, s34, 10\ns_add_u32 s59, s34, {OF}")
    a(f"s_lshl_b32 s34, s56, 2\ns_add_u32 s34, s34, s60\ns_lshl_b32 s34, s34, 4\ns_add_u32 s34, s34, s55\ns_lshl_b32 s34, s34, 11\ns_add_u32 s34, s34, {OF+2*MB}\ns_cmp_lt_u32 s31, 4\ns_cselect_b32 s58, s34, {WS_SIZE}")
    a("v_and_b32 v5, 31, v1\nv_add_u32 v7, 20, v5\nv_lshrrev_b32 v7, 5, v7\nv_sub_u32 v6, v5, v7\nv_lshrrev_b32 v7, 4, v5\nv_sub_u32 v6, v6, v7\nv_add_u32 v7, 4, v5\nv_lshrrev_b32 v7, 5, v7\nv_sub_u32 v6, v6, v7")
    a("v_and_b32 v5, 11, v5\nv_cmp_eq_u32 s[48:49], 11, v5\nv_lshrrev_b32 v5, 5, v1\nv_lshlrev_b32 v5, 9, v5\nv_cndmask_b32 v6, v6, 28, s[48:49]\nv_lshl_add_u32 v5, v6, 4, v5")
    a(f"s_mul_i32 s33, s55, 7\ns_lshr_b32 s34, s33, 3\ns_add_u32 s35, s33, 6\ns_lshr_b32 s35, s35, 3\ns_lshl_b32 s34, s34, 8\ns_lshl_b32 s35, s35, 8")
    a(f"s_add_u32 s34, s34, {NRM}\ns_add_u32 s35, s35, {NRM}\ns_lshl_b32 s37, s56, 4\nv_and_b32 v12, 12, v13\nv_add_u32 v12, s37, v12")
    a(f"s_lshl_b32 s37, s56, 2\ns_lshl_b32 s38, s61, 1\ns_add_u32 s37, s37, s38\ns_lshl_b32 s37, s37, 15\ns_add_u32 s37, s37, s29\ns_add_u32 s38, s37, {TBK}")
    NP=CFG.get("np",1); PR=[10,16,18,20][:NP]
    pl=lambda r: f"buffer_load_dwordx2 v[{r}:{r+1}], v158, s[24:27], 0 offen {CFG['pf']}"
    a(f"s_cbranch_vccnz L_P7\ns_cmp_lg_u32 s31, {CFG.get('pw',6)}\ns_cbranch_scc1 L_B1\nL_P7:\ns_mov_b32 exec_hi, vcc_hi")
    for k,r in enumerate(PR):
        a(pl(r))
        if k<NP-1: a(f"s_sleep {CFG.get('psl',10)}")
    a(f"s_mov_b32 s52, {SPIN}\nL_PL:")
    for r in PR:
        a(f"s_waitcnt vmcnt({NP-1})\nv_cmp_ne_u64 s[48:49], s[50:51], v[{r}:{r+1}]\ns_nop 0\ns_cmp_eq_u64 s[48:49], 0\ns_cbranch_scc1 L_PD\ns_sleep {CFG.get('psl2',2)}\n{pl(r)}")
    a("s_sub_u32 s52, s52, 1\ns_cbranch_scc0 L_PL\nL_PD:\ns_mov_b64 exec, -1")
    stamp(a,6)
    a("s_cbranch_vccz L_B1\ns_mov_b64 s[62:63], s[34:35]")
    i1_b(None)
    a("s_mov_b64 s[34:35], s[62:63]\nL_B1:\ns_barrier")
    if CFG.get("x7"): stamp(a,3)
    QR=[6,32,34][:CFG.get("nq",2)]
    plq=lambda r: f"buffer_load_dwordx2 v[{r}:{r+1}], v2, s[24:27], 0 offen "+CFG["pf"]
    a(f"s_cmp_lg_u32 s31, {CFG['pw']}\ns_cbranch_scc1 L_NQ\n{plq(6)}\nL_NQ:")
    vm.issue("nk","buffer_load_dword v10, v13, s[24:27], s34 offen offset:3584 sc1")
    vm.issue("nk","buffer_load_dword v11, v13, s[24:27], s35 offen offset:3584 sc1")
    PRO=(("K",0),("K",1),("V",0))+((("V",1),("K",2),("K",3)),(("K",2),),())[CFG["pro"]]
    for x in PRO: ld(vm,*x)
    def w7(x):
        a(f"s_waitcnt vmcnt({2+2*len(PRO)})")
        for i in range(8): a(mfma(176,32+4*i,144+4*i,"0" if i==0 else None))
        a("s_nop 15\ns_nop 3")
    special(w7,vm)
    if CFG["wop"]==1:
        a("s_and_b32 s33, s31, 6\ns_cmp_lg_u32 s33, 4\ns_cbranch_scc1 L_NW\ns_cmp_ge_u32 s30, 28\ns_cbranch_scc1 L_NW"); wo_loop(); a("L_NW:")
    if not CFG["late"]: special(i1_d,vm)
    a(f"s_cmp_lg_u32 s31, {CFG['pw']}\ns_cbranch_scc1 L_B2\ns_waitcnt vmcnt({2+2*len(PRO)})")
    for r in QR[1:]: a(plq(r)+(f"\ns_sleep {CFG.get('psl',5)}" if r!=QR[-1] else ""))
    a(f"s_mov_b32 s52, {SPIN}\ns_branch L_QE\nL_QL:")
    for k,r in enumerate(QR):
        a(f"s_waitcnt vmcnt({len(QR)-1})")
        if k==0: a("L_QE:")
        a(f"v_cmp_ne_u64 s[48:49], s[50:51], v[{r}:{r+1}]\ns_nop 0\ns_cmp_eq_u64 s[48:49], 0\ns_cbranch_scc1 L_B2\ns_sleep {CFG.get('psl3',1)}\n{plq(r)}")
    a("s_sub_u32 s52, s52, 1\ns_cbranch_scc0 L_QL")
    a("L_B2:\ns_barrier")
    if CFG.get("x7"): stamp(a,4)
    vm.issue("n","buffer_load_dword v14, v12, s[24:27], s34 offen sc1")
    vm.issue("n","buffer_load_dword v15, v12, s[24:27], s35 offen sc1")
    for qb in range(2):
        for m in range(2):
            vm.issue("q",f"buffer_load_dwordx4 {v(Q[qb]+4*m,4)}, v8, s[24:27], s{37+qb} offen offset:{m*1024} sc1")
    def clr(vmx):
        vmx.issue("clr","buffer_store_dwordx4 v[36:39], v8, s[24:27], s59 offen sc1")
        for m in range(2): vmx.issue("clr",f"buffer_store_dwordx4 v[36:39], v8, s[24:27], s58 offen offset:{m*1024} sc1")
    SCH=()
    LSCH={0:{CFG.get("ct",1):(("K",CFG.get("ct",1)//2+4),"C")},1:{0:(("V",1),("K",3)),1:(("V",2),("K",4)),2:(("V",3),),3:(("K",5),"C")},
          2:{0:(("K",2),("V",1)),1:(("K",3),("V",2)),2:(("K",4),("V",3)),3:(("K",5),"C")}}[CFG["pro"]]
    def sch(l,vmx):
        for x in l:
            if x=="C": clr(vmx)
            else: ld(vmx,*x)
    for r in range(4): a(f"v_mov_b32 v{36+r}, 0")
    sch(SCH,vm)
    if CFG["late"]: special(i1_d,vm)
    if CFG["stop"]=="P":
        a("s_waitcnt vmcnt(0)"); stamp_out(a,7); a("L_END:\ns_endpgm"); return a
    a("s_bitcmp1_b32 s55, 0\ns_cselect_b32 s38, -1, 0\ns_mov_b32 s39, 0\ns_mov_b32 s40, 0\ns_cselect_b32 s41, 0, -1")
    vm.wait("nk")
    a("v_add_f32 v10, v10, v11\ns_nop 1")
    for m in ("quad_perm:[1,0,3,2]","quad_perm:[2,3,0,1]","row_half_mirror","row_mirror"):
        a(f"v_max_f32_dpp v10, v10, v10 {m} row_mask:0xf bank_mask:0xf\ns_nop 1")
    a("v_readlane_b32 s32, v10, 0\nv_readlane_b32 s33, v10, 16\nv_readlane_b32 s42, v10, 32\nv_readlane_b32 s43, v10, 48\ns_nop 1")
    a("s_max_u32 s32, s32, s33\ns_max_u32 s42, s42, s43\ns_max_u32 s32, s32, s42")
    vm.wait("n")
    if CFG.get("x7"): stamp(a,5)
    if not CFG["late"]: special(i1_e,vm)
    a("v_add_f32 v14, v14, v15\ns_nop 1")
    for m in ("quad_perm:[1,0,3,2]","quad_perm:[2,3,0,1]"):
        a(f"v_max_f32_dpp v14, v14, v14 {m} row_mask:0xf bank_mask:0xf\ns_nop 1")
    a("v_mul_f32 v14, s32, v14\ns_nop 0\nv_readfirstlane_b32 s32, v14\ns_nop 1")
    vm.wait("q"); qmask(Q[0]); qmask(Q[1])
    a(f"s_cmp_le_u32 s32, {f2u(TH*TH)}\ns_cbranch_scc0 L_SLOW")
    def Kf(kt,m): return R+16*(kt%4)+4*m
    def Vf(kt,m): return R+16*(kt%4)+8+4*m
    NT=32
    def qk(i,m):
        kt,qb=divmod(i,2)
        if m==0 and qb==0: vm.wait(("K",kt))
        a(mfma(S[qb],Kf(kt,m),Q[qb]+4*m,"0" if m==0 else None))
    def pv(i,m):
        kt,qb=divmod(i,2)
        if m==0 and qb==0: vm.wait(("V",kt))
        a(mfma(O[qb],Vf(kt,m),P[qb]+4*m,"0" if (kt==0 and m==0) else None))
    def e(i,r): qb=i%2; return f"v_exp_f32 v{S[qb]+r}, v{S[qb]+r}"
    def c(i,j): qb=i%2; return f"v_cvt_pk_bf16_f32 v{P[qb]+j}, v{S[qb]+2*j}, v{S[qb]+2*j+1}"
    ins=dict(zip(CFG['ins'],(i2_a,i2_b,i2_c,i2_d))); t2=CFG['ins'][0]
    if CFG.get("noB"): ins={}
    stamp(a,7)
    a("s_setprio 3")
    qk(0,0); qk(0,1)
    a("s_nop 11")
    for i in range(NT):
        seq=[e(i,0),e(i,1),e(i,2),c(i,0),e(i,3),e(i,4),c(i,1),e(i,5),e(i,6),c(i,2),e(i,7),e(i,8),c(i,3),e(i,9),e(i,10),c(i,4),e(i,11),e(i,12),c(i,5),e(i,13),e(i,14),c(i,6),e(i,15)]
        if i in CFG["prio"]: a(f"s_setprio {2-CFG['prio'].index(i)}")
        a(seq[0])
        if i>0: a(c(i-1,7))
        if i+1<NT: qk(i+1,0)
        for x in seq[1:5]: a(x)
        if i+1<NT: qk(i+1,1)
        for x in seq[5:11]: a(x)
        if i>0: pv(i-1,0)
        if i==t2:
            vm.drop_sp(); a("s_cmp_lt_u32 s31, 4\ns_cselect_b64 vcc, -1, 0")
        if i in ins: special(ins[i],vm)
        j=i//2
        if i in LSCH: sch(LSCH[i],vm)
        elif i%2==0:
            if j+2<16: ld(vm,"V",j+2)
        else:
            if j+4<16: ld(vm,"K",j+4)
        if CFG["late"] and i==CFG["ie"]: special(i1_e,vm)
        if CFG["wop"]==2 and i>=CFG["wo0"] and (i-CFG["wo0"])%CFG["wos"]==0 and (i-CFG["wo0"])//CFG["wos"]<14: wodma((i-CFG["wo0"])//CFG["wos"],vm)
        if i==CFG["f6"]: f6(vm)
        if i==CFG["p3"]: vm.issue("p3",PL3)
        if i==30:
            vm.drop_sp(); vm.wait("p3"); spin(a,PC3,PL3)
        for x in seq[11:17]: a(x)
        if i>0: pv(i-1,1)
        for x in seq[17:23]: a(x)
    a("s_nop 0"); a(c(NT-1,7)); a("s_nop 1")
    pv(NT-1,0); pv(NT-1,1)
    a("L_TAIL:")
    stamp(a,8)
    def red_write(B,rank,dmul,dadd,base):
        for g in range(4):
            L=lab("R"); E=lab("R")
            a(f"s_sub_u32 s34, s{rank}, {g+1}\ns_and_b32 s34, s34, 3\ns_cmp_eq_u32 s34, 3\ns_cbranch_scc1 {L}")
            a(f"s_lshl_b32 s34, s34, 11\ns_mul_i32 s35, s{dadd}, 6144\ns_add_u32 s34, s34, s35\ns_add_u32 s34, s34, {base+g*dmul*6144}\nv_add_u32 v10, s34, v8")
            a(f"ds_write_b128 v10, {v(B+8*g,4)}\nds_write_b128 v10, {v(B+8*g+4,4)} offset:1024\ns_branch {E}\n{L}:")
            for r in range(8): a(f"v_mov_b32 v{96+r}, v{B+8*g+r}")
            a(f"{E}:")
    def red_read(base):
        a(f"s_mul_i32 s34, s31, 6144\ns_add_u32 s34, s34, {base}\nv_add_u32 v10, s34, v8")
        for q in range(6): a(f"ds_read_b128 {v(104+4*q,4)}, v10 offset:{q*1024}")
        a("s_waitcnt lgkmcnt(2)")
        for r in range(8): a(f"v_add_f32 v{96+r}, v{96+r}, v{104+r}")
        a("s_waitcnt lgkmcnt(0)")
        for r in range(8): a(f"v_add_f32 v{112+r}, v{112+r}, v{120+r}")
        for r in range(8): a(f"v_add_f32 v{96+r}, v{96+r}, v{112+r}")
    a("s_lshl_b32 s33, s61, 2\ns_lshr_b32 s32, s31, 1")
    a("v_lshrrev_b32 v6, 5, v1\nv_bfe_u32 v7, v1, 2, 2\nv_lshl_add_u32 v11, v6, 2, v7\nv_min_u32 v7, 2, v7\nv_mad_u32_u24 v12, v6, 3, v7\nv_add_u32 v12, 8, v12")
    a("v_bfe_u32 v5, v1, 4, 1\nv_lshlrev_b32 v5, 5, v5\nv_and_b32 v7, 3, v1\nv_lshl_add_u32 v5, v7, 3, v5\ns_mul_i32 s34, s32, 14336\ns_add_u32 s34, s34, %d\nv_add_u32 v5, s34, v5"%WOB)
    for m in range(2):
        for u in range(2):
            d=240+2*m+u
            if m: a(f"v_add_u32 v{11+u}, 14, v{11+u}")
            a(f"v_bfe_u32 v7, v{11+u}, 1, 1\nv_lshl_add_u32 v{d}, v{11+u}, 7, v5\nv_lshl_add_u32 v{d}, v7, 6, v{d}\nv_xor_b32 v{d+4}, 64, v{d}")
    red_write(64,60,1,33,EX)
    a("s_lshl_b32 s34, s53, 1\ns_add_u32 s34, s34, s57\ns_lshl_b32 s34, s34, 5\nv_and_b32 v5, 31, v1\nv_add_u32 v5, s34, v5\nv_mul_u32_u24 v5, 1792, v5\nv_lshl_add_u32 v248, v6, 4, v5")
    a("s_lshl_b32 s70, s54, 7\ns_lshl_b32 s34, s32, 5\ns_add_u32 s70, s70, s34\ns_add_u32 s71, s70, 896")
    srd(a,44,64,2048*896*2)
    ofr_addr(1)
    for x in ofr(1,144).split("\n"): vm.issue("of",x)
    a("s_waitcnt vmcnt(8) lgkmcnt(0)\ns_barrier")
    red_read(EX)
    a("v_rcp_f32 v11, v103\ns_nop 0")
    for r in range(7): a(f"v_mul_f32 v{96+r}, v{96+r}, v11")
    a(f"v_mov_b32 v103, {TAG}")
    for j in range(4): a(f"v_cvt_pk_bf16_f32 v{104+j}, v{96+2*j}, v{97+2*j}")
    vm.issue("oa","buffer_store_dwordx4 v[104:107], v8, s[24:27], s59 offen "+CFG["osf"])
    stamp(a,9)
    a("s_cmp_ge_u32 s30, 28\ns_cbranch_scc1 L_FIN")
    if CFG["stop"]=="ATT": a("s_branch L_FIN")
    def tagcmp(F):
        return (f"v_min3_u32 v11, v{F+3}, v{F+7}, v{F+11}\nv_min3_u32 v12, v{F+15}, v{F+19}, v{F+23}\nv_min3_u32 v11, v11, v{F+27}, v{F+31}\nv_min_u32 v11, v11, v12\n"
                f"v_cmp_gt_u32 s[48:49], s42, v11\ns_nop 0")
    def oproj(F):
        def rd(f,fs):
            hl,m=divmod(f,2)
            for nt in range(2):
                for u in range(2): a(f"ds_read_b64_tr_b16 {v(224+8*fs+4*nt+2*u,2)}, v{240+4*nt+2*m+u} offset:{hl*3584}")
        rd(0,0)
        return rd
    def oproj2(F,rd):
        for f in range(8):
            fs=f&1
            if f<7: rd(f+1,fs^1); a("s_waitcnt lgkmcnt(4)")
            else: a("s_waitcnt lgkmcnt(0)")
            a(mfma(32,224+8*fs,F+4*f,"0" if f==0 else None)); a(mfma(48,228+8*fs,F+4*f,"0" if f==0 else None))
    def ostore(so):
        for j in range(4): a(f"v_cvt_pk_bf16_f32 v{104+j}, v{96+2*j}, v{97+2*j}")
        a(f"s_nop 1\nv_permlane32_swap_b32 v104, v106\nv_permlane32_swap_b32 v105, v107\nbuffer_store_dwordx4 v[104:107], v248, s[44:47], s{so} offen")
    a(f"s_mov_b32 s42, {TAG}")
    rd=oproj(144)
    vm.wait("of"); spin(a,tagcmp(144),ofr(1,144))
    oproj2(144,rd)
    ofr_addr(0)
    for r in range(8): a(f"v_subrev_u32 v{240+r}, {WOB-WOA}, v{240+r}")
    a("s_barrier")
    red_write(32,32,2,57,EX)
    a(ofr(0,192))
    a("s_waitcnt lgkmcnt(0)\ns_barrier")
    red_read(EX); ostore(71)
    stamp(a,10)
    rd=oproj(192)
    a("s_waitcnt vmcnt(1)"); spin(a,tagcmp(192),ofr(0,192))
    stamp(a,11)
    oproj2(192,rd)
    a("s_nop 11")
    red_write(32,32,2,57,WOB)
    a("s_waitcnt lgkmcnt(0)\ns_barrier")
    red_read(WOB); ostore(70)
    a("L_FIN:")
    stamp_out(a,12)
    a("L_END:\ns_endpgm")
    a("L_SLOW:"); clr(VM(a)); a("s_waitcnt vmcnt(0)"); f6(None)
    if CFG["wop"]==2:
        for k in range(14): wodma(k,None)
    if CFG["late"]: special(i1_e,None)
    a("L_S1:\nv_mov_b32 v10, 0xff800000\nv_mov_b32 v11, 0xff800000\ns_mov_b32 s43, 0\nL_S2:\ns_lshl_b32 s42, s43, 15\ns_xor_b32 s42, s42, s70")
    a(f"buffer_load_dwordx4 v[192:195], v8, s[24:27], s42 offen sc1\nbuffer_load_dwordx4 v[196:199], v8, s[24:27], s42 offen offset:1024 sc1\ns_waitcnt vmcnt(0)")
    for qb in range(2):
        a(mfma(S[qb],192,Q[qb],"0")); a(mfma(S[qb],196,Q[qb]+4))
    a("s_nop 15")
    for qb in range(2):
        for r in range(0,16,2): a(f"v_max3_f32 v{10+qb}, v{10+qb}, v{S[qb]+r}, v{S[qb]+r+1}")
    a("s_add_u32 s43, s43, 1\ns_cmp_lg_u32 s43, 16\ns_cbranch_scc1 L_S2")
    a("v_mov_b32 v14, v10\nv_mov_b32 v15, v11\ns_nop 1\nv_permlane32_swap_b32 v10, v14\nv_permlane32_swap_b32 v11, v15")
    a("v_max_f32 v10, v10, v14\nv_max_f32 v11, v11, v15")
    a(f"s_barrier\ns_lshl_b32 s34, s31, 9\ns_add_u32 s34, s34, {EX}\nv_add_u32 v12, s34, v13\nds_write_b32 v12, v10\nds_write_b32 v12, v11 offset:256")
    a(f"s_lshl_b32 s34, s61, 11\ns_add_u32 s34, s34, {EX}\nv_add_u32 v12, s34, v13\ns_waitcnt lgkmcnt(0)\ns_barrier")
    for k in range(4): a(f"ds_read_b32 v{192+k}, v12 offset:{k*512}\nds_read_b32 v{196+k}, v12 offset:{k*512+256}")
    a("s_waitcnt lgkmcnt(0)\ns_barrier")
    for qb in range(2):
        b=192+4*qb
        a(f"v_max3_f32 v{b}, v{b}, v{b+1}, v{b+2}\nv_max_f32 v{10+qb}, v{b}, v{b+3}")
    for r in range(64,96): a(f"v_mov_b32 v{r}, 0")
    a("s_mov_b32 s43, 0\nL_S3:\ns_lshl_b32 s42, s43, 15\ns_xor_b32 s42, s42, s70\ns_lshl_b32 s37, s43, 11\ns_xor_b32 s37, s37, s71")
    a(f"buffer_load_dwordx4 v[192:195], v8, s[24:27], s42 offen sc1\nbuffer_load_dwordx4 v[196:199], v8, s[24:27], s42 offen offset:1024 sc1")
    a(f"buffer_load_dwordx4 v[200:203], v5, s[24:27], s37 offen sc1\nbuffer_load_dwordx4 v[204:207], v5, s[24:27], s37 offen offset:1024 sc1\ns_waitcnt vmcnt(0)")
    for qb in range(2):
        a(mfma(S[qb],192,Q[qb],"0")); a(mfma(S[qb],196,Q[qb]+4))
    a("s_nop 15")
    for qb in range(2):
        for r in range(16): a(f"v_sub_f32 v{S[qb]+r}, v{S[qb]+r}, v{10+qb}")
        for r in range(16): a(e(qb,r))
        a("s_nop 0")
        for j in range(8): a(c(qb,j))
    a("s_nop 1")
    for qb in range(2):
        a(mfma(O[qb],200,P[qb])); a(mfma(O[qb],204,P[qb]+4))
    a("s_add_u32 s43, s43, 1\ns_cmp_lg_u32 s43, 16\ns_cbranch_scc1 L_S3")
    a("s_cmp_lt_u32 s31, 4\ns_cbranch_scc0 L_S4")
    i2_a(None); i2_b(None); i2_c(None); a("s_nop 15"); i2_d(None)
    a("L_S4:"); a(PL3); a("s_waitcnt vmcnt(0)"); spin(a,PC3,PL3); a("s_branch L_TAIL\nL_CEND:")
    return a
def emit(path):
    uid[0]=0
    a=gen(); N="concat_heads__softmax_full_mha__linear_attn_block__prompt_kernel"
    for e_ in check(a.lines,"fused"): print("HAZARD",e_)
    hdr="; generated by work/gen/fused.py (hand-written generator)\n; @launch grid=(256,1,1) block=(512,1,1) lds=163840\n"
    kd=f""".section .rodata,"a"
.p2align 6
.amdhsa_kernel {N}
  .amdhsa_next_free_vgpr 256
  .amdhsa_next_free_sgpr 102
  .amdhsa_accum_offset 256
  .amdhsa_group_segment_fixed_size 0
  .amdhsa_kernarg_size 72
  .amdhsa_user_sgpr_count 2
  .amdhsa_user_sgpr_kernarg_segment_ptr 1
  .amdhsa_system_sgpr_workgroup_id_x 1
.end_amdhsa_kernel
"""
    open(path,"w").write(hdr+'.amdgcn_target "amdgcn-amd-amdhsa--gfx950"\n.text\n'+a.text()+kd)
if __name__=="__main__":
    if "--instr" in sys.argv: INSTR=True
    for x in sys.argv[2:]:
        if "=" in x:
            k,val=x.split("="); CFG[k]=eval(val)
    emit(sys.argv[1])
```

```python
import struct, sys
from asmlib import *
def f2u(x): return struct.unpack("<I",struct.pack("<f",x))[0]
MB=1<<20
TBS=28672
QG=0; KG=2*MB; VF=4*MB; PQG=6*MB; PKT=8*MB; VT=10*MB; OF=12*MB
TBV=4*456*16
KVS=16*MB
CNT=KVS+65536
NRM=16*MB+131072
FL=17*MB
F1=FL; F2=FL+128*128; F6=FL+256*128; F7=FL+512*128
TBK=32768
WS_SIZE=18*MB
EX=0; WOA=49152; WOB=106496
TAG=0x00800000
CFG=dict(ins=(12,17,23,24),rot=1,la=1,fill=(4,6),f6=9,f7=16,cpf=1,p3=22,prio=(16,26,30),stop=None,sleep=4,wo0=3,late=0,wop=2,wos=2,nq=1,hoist=1,ie=4,pro=2,fs=7,pw=6,psl2=4,pf='sc0 sc1',sf='sc0 sc1',p3f='sc1',p4f='sc1',off='sc1',osf='sc1')
LOG2E=1.4426950408889634
CS=28**-0.5*LOG2E
TH=60.0
SPIN=20000
MF="v_mfma_f32_32x32x16_bf16"
INSTR=False
STAMP=32*MB
def mfma(d,a,b,c=None):
    return f"{MF} {v(d,16)}, {v(a,4)}, {v(b,4)}, {v(d,16) if c is None else c}"
def srd(a,d,base,size):
    a(f"s_mov_b32 s{d}, s{base}\ns_and_b32 s{d+1}, s{base+1}, 0xffff\ns_mov_b32 s{d+2}, {size}\ns_mov_b32 s{d+3}, 0x20000")
class VM:
    def __init__(self,a): self.a=a; self.q=[]; self.done=0
    def issue(self,tag,txt,sp=False): self.a(txt); self.q.append((tag,sp))
    def wait(self,tag,extra=""):
        idx=max(i for i,t in enumerate(self.q) if t[0]==tag)
        sp=self.q[idx][1]
        ns=min(63,len(self.q)-1-idx); nb=min(63,sum(1 for t in self.q[idx+1:] if not t[1]))
        if sp:
            self.a(f"s_waitcnt vmcnt({ns}) {extra}"); return
        if idx<self.done:
            if extra: self.a(f"s_waitcnt {extra}")
            return
        self.done=idx+1
        if ns==nb: self.a(f"s_waitcnt vmcnt({nb}) {extra}")
        else:
            L=lab("W"); self.a(f"s_waitcnt vmcnt({ns}) {extra}\ns_cbranch_vccnz {L}\ns_waitcnt vmcnt({nb})\n{L}:")
    def drop_sp(self):
        nd=sum(1 for t in self.q[:self.done] if not t[1])
        self.q=[t for t in self.q if not t[1]]; self.done=nd
NSTAMP=12
def stamp(a,i,real=False,pst=False):
    if not INSTR: return
    if CFG.get("pst") and 2<i<12 and not pst: return
    if pst and not CFG.get("pst"): return
    a(f"s_memtime s[{72+2*i}:{73+2*i}]")
    if real: a(f"s_memrealtime s[{98+2*(0 if i==0 else 1)}:{99+2*(0 if i==0 else 1)}]")
    a("s_waitcnt lgkmcnt(0)")
def stamp_out(a,n):
    if not INSTR: return
    a("s_waitcnt vmcnt(0)")
    stamp(a,n,True)
    a("s_mov_b64 exec, 1")
    a(f"s_lshl_b32 s62, s2, 3\ns_add_u32 s62, s62, s31\ns_lshl_b32 s62, s62, 7\ns_add_u32 s62, s62, {STAMP}\ns_mov_b32 s26, {64*MB}\nv_mov_b32 v0, 0")
    for i in range(n+1):
        a(f"v_mov_b32 v1, s{72+2*i}\nbuffer_store_dword v1, v0, s[24:27], s62 offen offset:{4*i}")
    a("v_mov_b32 v1, s98\nbuffer_store_dword v1, v0, s[24:27], s62 offen offset:64\nv_mov_b32 v1, s100\nbuffer_store_dword v1, v0, s[24:27], s62 offen offset:68")
uid=[0]
def lab(p):
    uid[0]+=1; return f"L{p}{uid[0]}"
def spin(a, cmp, loads):
    L=lab("P"); D=lab("D")
    a(f"s_mov_b32 s52, {SPIN}\n{L}:\n{cmp}\ns_cmp_eq_u64 s[48:49], 0\ns_cbranch_scc1 {D}\ns_sub_u32 s52, s52, 1\ns_cbranch_scc1 {D}")
    a(f"s_sleep {CFG['sleep']}\n{loads}\ns_waitcnt vmcnt(0)\ns_branch {L}\n{D}:")
def flag_store(a, soff, vm=None, t=14):
    a(f"v_mov_b32 v{t}, s50\nv_mov_b32 v{t+1}, s51\ns_mov_b64 exec, 1")
    x=f"buffer_store_dwordx2 v[{t}:{t+1}], v9, s[24:27], s{soff} offen {CFG['sf']}"
    if vm: vm.issue("flag",x)
    else: a(x)
    a("s_mov_b64 exec, -1")

def gen():
    a=Asm(); N="concat_heads__softmax_full_mha__linear_attn_block__prompt_kernel"
    WB=114688; GR=[[i] for i in range(7)]+[[7+2*i,8+2*i] for i in range(7)]
    a(f".globl {N}\n.p2align 8\n.type {N},@function\n{N}:")
    a("s_cmp_ge_u32 s2, 256\ns_cbranch_scc1 L_END")
    a("s_load_dwordx8 s[4:11], s[0:1], 0\ns_load_dwordx4 s[12:15], s[0:1], 32\ns_load_dwordx4 s[64:67], s[0:1], 48\ns_load_dwordx2 s[68:69], s[0:1], 64\ns_memrealtime s[50:51]")
    stamp(a,0,True)
    a("v_lshrrev_b32 v2, 6, v0\nv_and_b32 v1, 63, v0\ns_and_b32 s32, s2, 7\ns_lshr_b32 s30, s2, 3")
    a("v_readfirstlane_b32 s31, v2")
    a("s_mul_i32 s34, s30, 37\ns_lshr_b32 s34, s34, 8")
    a("s_mul_i32 s35, s34, 7\ns_sub_u32 s54, s30, s35")
    a("s_lshl_b32 s33, s32, 2\ns_add_u32 s53, s33, s34")
    a("s_and_b32 s28, s32, 1\ns_lshr_b32 s33, s32, 1\ns_lshl_b32 s33, s33, 2\ns_add_u32 s58, s33, s34")
    a("s_and_b32 s60, s31, 3\ns_lshr_b32 s61, s31, 2\ns_and_b32 s57, s31, 1")
    if CFG["rot"]==1:
        a("s_lshl_b32 s35, s34, 1\ns_add_u32 s35, s35, s54\ns_cmp_ge_u32 s35, 7\ns_cselect_b32 s36, 7, 0\ns_sub_u32 s35, s35, s36\ns_cmp_ge_u32 s35, 7\ns_cselect_b32 s36, 7, 0\ns_sub_u32 s40, s35, s36")
    elif CFG["rot"]==2: a("s_mov_b32 s40, s34")
    elif CFG["rot"]==3: a("s_mov_b32 s40, s54")
    else: a("s_mov_b32 s40, 0")
    a("v_lshrrev_b32 v5, 3, v1\nv_and_b32 v6, 7, v1\nv_lshrrev_b32 v11, 1, v5\nv_xor_b32 v12, v6, v11")
    a("s_lshl_b32 s34, s58, 7\ns_lshl_b32 s33, s60, 5\ns_add_u32 s34, s34, s33\nv_add_u32 v10, s34, v5\nv_mul_u32_u24 v10, 896, v10")
    a("v_lshl_add_u32 v96, v12, 4, v10\nv_xor_b32 v12, 4, v12\nv_lshl_add_u32 v97, v12, 4, v10\nv_add_u32 v97, 7168, v97\nv_add_u32 v98, 14336, v96\nv_add_u32 v99, 14336, v97")
    a("s_lshl_b32 s35, s60, 4\nv_add_u32 v7, s35, v5\nv_mul_u32_u24 v10, 2688, v7\nv_and_b32 v11, 1, v11\nv_lshlrev_b32 v11, 2, v11\nv_xor_b32 v11, v6, v11\nv_lshl_add_u32 v3, v11, 4, v10")
    a("s_lshl_b32 s34, s54, 7\nv_add_u32 v3, s34, v3\ns_lshl_b32 s36, s31, 10\ns_lshl_b32 s37, s60, 12\ns_lshl_b32 s59, s60, 11")
    a("s_lshl_b32 s35, s31, 3\nv_add_u32 v7, s35, v5\nv_mul_u32_u24 v10, 896, v7\nv_lshl_add_u32 v4, v11, 4, v10\nv_add_u32 v4, s34, v4")
    a("v_lshlrev_b32 v8, 4, v1\nv_mov_b32 v9, 0\nv_lshlrev_b32 v13, 2, v1")
    a("s_waitcnt lgkmcnt(0)")
    a("s_cmp_eq_u32 s28, 0\ns_cselect_b32 s4, s4, s10\ns_cselect_b32 s5, s5, s11\ns_cselect_b32 s6, s6, s12\ns_cselect_b32 s7, s7, s13")
    a("s_movk_i32 s41, 896\ns_movk_i32 s42, 1792\ns_mov_b32 s43, 0")
    srd(a,16,4,2048*448*2); srd(a,20,6,448*1344*2)
    vm=VM(a)
    def dma(u):
        part,i7=divmod(u,7)
        a(f"s_lshl_b32 s38, s40, 7\ns_mul_i32 s39, s40, 172032\ns_add_u32 s40, s40, 1\ns_cmp_eq_u32 s40, 7\ns_cselect_b32 s40, 0, s40")
        for i in range(2):
            a(f"s_add_u32 m0, s59, {WB+(u%6)*8192+i*1024}\ns_add_u32 s39, s39, {f's{41+part}' if i==0 else 21504}")
            vm.issue(("d",u),"buffer_load_dwordx4 v3, s[20:23], s39 offen lds")
        if part==0:
            for i in range(4):
                a(f"s_add_u32 m0, s37, {u*16384+i*1024}\ns_nop 0")
                vm.issue(("d",u),f"buffer_load_dwordx4 v{96+i}, s[16:19], s38 offen lds")
    a("s_cmp_ge_u32 s30, 28\ns_cbranch_scc1 L_A0\ns_cmp_lt_u32 s31, 4\ns_cbranch_scc1 L_A0")
    dma(0)
    a("L_A0:")
    srd(a,24,68,WS_SIZE); srd(a,44,66,256)
    a("s_and_b32 s55, s30, 1\ns_lshl_b32 s33, s32, 1\ns_add_u32 s55, s55, s33\ns_lshr_b32 s56, s30, 1")
    a("s_mul_i32 s33, s55, 7\ns_lshr_b32 s29, s33, 1\ns_lshl_b32 s29, s29, 9")
    a("s_lshl_b32 s34, s61, 3\ns_add_u32 s34, s34, s56\ns_and_b32 s34, s34, 15\ns_lshl_b32 s35, s60, 4\ns_add_u32 s34, s34, s35")
    a(f"s_lshl_b32 s70, s34, 15\ns_add_u32 s70, s70, s29\ns_add_u32 s70, s70, {KG}")
    a(f"s_lshl_b32 s71, s55, 6\ns_add_u32 s71, s71, s34\ns_lshl_b32 s71, s71, 11\ns_add_u32 s71, s71, {VF}")
    a(f"s_lshr_b32 s34, s33, 4\ns_add_u32 s35, s33, 6\ns_lshr_b32 s35, s35, 4\ns_sub_u32 s35, s35, s34\ns_lshl_b32 s34, s34, 11\ns_add_u32 s34, s34, {F7}\ns_lshl_b32 s35, s35, 11")
    a(f"v_and_b32 v10, 15, v1\nv_lshlrev_b32 v10, 7, v10\nv_bfe_u32 v11, v1, 4, 1\nv_mul_u32_u24 v11, s35, v11\nv_add3_u32 v158, v10, v11, s34")
    a(f"s_add_u32 s34, s34, {8<<11}\ns_lshl_b32 s35, s56, 7\ns_add_u32 s35, s35, s34\ns_lshl_b32 s33, s55, 7\ns_add_u32 s34, s34, s33")
    a("s_cmp_eq_u32 s31, 7\ns_cselect_b32 exec_hi, -1, 0\ns_mov_b32 exec_lo, 0\nv_add_u32 v158, s35, v11")
    a("s_cselect_b32 exec_lo, -1, 0\ns_mov_b32 exec_hi, 0\nv_mov_b32 v158, s34\ns_mov_b64 exec, -1")
    a(f"s_lshr_b32 s34, s53, 1\ns_and_b32 s34, s34, 15\ns_lshl_b32 s34, s34, 10\ns_add_u32 s34, s34, {F6}\nv_add_u32 v0, s34, v8")
    a("s_or_b32 s50, s50, 1\ns_lshl_b32 s34, s2, 3\ns_add_u32 s34, s34, s31\ns_cmp_lg_u32 s34, 2040\ns_cbranch_scc1 L_NN")
    a("v_mov_b32 v6, s50\nv_mov_b32 v7, s51\ns_mov_b64 exec, 1\nbuffer_store_dwordx2 v[6:7], v9, s[44:47], 0 offen sc1\ns_mov_b64 exec, -1\nL_NN:")
    a("s_cmp_ge_u32 s30, 28\ns_cbranch_scc1 L_IDLE\ns_cmp_lt_u32 s31, 4\ns_cbranch_scc1 L_CMP")
    def NONCE():
        L=lab("N"); D=lab("N")
        return (f"v_readfirstlane_b32 s50, v156\nv_readfirstlane_b32 s51, v157\ns_mov_b32 s52, {SPIN}\n{L}:\ns_cmp_lg_u32 s50, 0\ns_cbranch_scc1 {D}\ns_sub_u32 s52, s52, 1\ns_cmp_eq_u32 s52, 0\ns_cbranch_scc1 {D}\n"
          f"buffer_load_dwordx2 v[156:157], v9, s[44:47], 0 offen sc1\ns_waitcnt vmcnt(0)\nv_readfirstlane_b32 s50, v156\nv_readfirstlane_b32 s51, v157\ns_branch {L}\n{D}:")
    def get_nonce(): a(NONCE())
    nxt=1
    for g,grp in enumerate(GR):
        lim=min(20, grp[-1]+(CFG["la"] if g<6 else 2), (GR[g-2][-1] if g>=2 else -1)+6)
        while nxt<=lim: dma(nxt); nxt+=1
        if g==0: stamp(a,1)
        vm.wait(("d",grp[-1]))
        if 0<g<7: stamp(a,2+g,pst=True)
        a("s_barrier")
        if g==0: stamp(a,2)
    stamp(a,3); stamp(a,9,pst=True)
    a("buffer_load_dwordx2 v[156:157], v9, s[44:47], 0 offen sc1\ns_waitcnt vmcnt(0)"); get_nonce()
    srd(a,16,8,448*448*2); srd(a,20,14,448*448*2)
    if CFG["wop"]<2: a("s_and_b32 s34, s31, 1\ns_lshl_b32 s35, s34, 2\ns_sub_u32 s35, s31, s35\ns_mul_i32 s35, s35, 7168\nv_subrev_u32 v4, s35, v4\ns_lshl_b32 s36, s34, 12")
    a("s_barrier")
    stamp(a,4); stamp(a,5)
    if CFG.get("lsl",0): a(f"s_cmp_lt_u32 s31, 6\ns_cbranch_scc1 L_WO\ns_sleep {CFG['lsl']}\nL_WO:")
    def wo_loop():
        for p in range(2):
            a(f"s_add_u32 s33, s36, {WOA if p else WOB}\ns_mov_b32 s43, 0\nL_WO{p}:")
            for g in range(4):
                a(f"s_add_u32 m0, s33, {g*1024}\ns_add_u32 s42, s43, {g*7168}\nbuffer_load_dwordx4 v4, s[{20-4*p}:{23-4*p}], s42 offen lds")
            a(f"s_add_u32 s33, s33, 8192\ns_add_u32 s43, s43, {64*896}\ns_cmp_lg_u32 s43, {7*64*896}\ns_cbranch_scc1 L_WO{p}")
    if CFG["wop"]==0:
        a("s_cmp_ge_u32 s31, 6\ns_cbranch_scc1 L_ATT"); wo_loop()
    a("s_branch L_ATT")
    a("L_CMP:")
    a(f"s_lshl_b32 s41, s58, 2\ns_add_u32 s41, s41, s60")
    a("s_lshl_b32 s34, s54, 4\ns_add_u32 s35, s34, 22\ns_add_u32 s34, s34, 6\ns_mul_i32 s34, s34, 9363\ns_lshr_b32 s34, s34, 16\ns_mul_i32 s35, s35, 9363\ns_lshr_b32 s35, s35, 16\ns_sub_u32 s35, s35, s34")
    for r in range(4): a(f"v_mov_b32 v{16+r}, 0\nv_mov_b32 v{20+r}, 0x3f803f80")
    a("v_lshrrev_b32 v5, 4, v1\nv_lshlrev_b32 v5, 17, v5\nv_bfe_u32 v6, v1, 2, 2\nv_lshl_add_u32 v5, v6, 9, v5\nv_and_b32 v6, 3, v1\nv_lshl_add_u32 v5, v6, 4, v5")
    a(f"v_mul_u32_u24 v6, 7296, v1\ns_lshl_b32 s38, s34, 17\ns_lshl_b32 s39, s41, 11\ns_add_u32 s38, s38, s39\ns_add_u32 s38, s38, {VF+448}")
    a(f"s_mul_i32 s39, s41, {TBV}\ns_lshl_b32 s42, s54, 4\ns_add_u32 s39, s39, s42\ns_add_u32 s39, s39, {VT+7168}")
    a("s_cmp_eq_u32 s35, 3\ns_cselect_b32 s49, 0xffff, 0\ns_cmp_eq_u32 s28, 0\ns_cselect_b32 s38, s38, s39\ns_cselect_b32 s48, -1, 15\ns_cselect_b32 s49, s49, 0\ns_cselect_b64 s[42:43], -1, 0")
    a("v_cndmask_b32 v5, v6, v5, s[42:43]\ns_mov_b64 exec, s[48:49]")
    a("buffer_store_dwordx4 v[20:23], v5, s[24:27], s38 offen sc1")
    a(f"s_mov_b64 exec, -1\ns_add_u32 s34, s34, s60\ns_cmp_lt_u32 s60, s35\ns_cselect_b32 s38, s28, 0\ns_cmp_eq_u32 s34, s58\ns_cselect_b32 s38, s38, 0\ns_cmp_eq_u32 s38, 0\ns_cbranch_scc1 L_NZ")
    a(f"s_lshl_b32 s38, s34, 12\ns_add_u32 s38, s38, {KVS}\ns_lshl_b32 s39, s34, 7\ns_add_u32 s39, s39, {CNT}")
    for k in range(4): a(f"buffer_store_dwordx4 v[16:19], v8, s[24:27], s38 offen offset:{k*1024} sc1")
    a("s_mov_b64 exec, 1\nbuffer_store_dwordx4 v[16:19], v9, s[24:27], s39 offen sc1\ns_mov_b64 exec, -1\nL_NZ:")
    a("s_lshr_b32 s43, s31, 1\ns_lshl_b32 s41, s58, 1\ns_add_u32 s41, s41, s57\ns_lshl_b32 s41, s41, 1\ns_lshl_b32 s42, s54, 1\ns_add_u32 s42, s42, s43")
    a("v_and_b32 v5, 31, v1\nv_lshrrev_b32 v6, 5, v1\ns_lshl_b32 s34, s57, 6\nv_add_u32 v7, s34, v5")
    a("v_bfe_u32 v10, v7, 1, 3\nv_xor_b32 v10, v10, v6\nv_lshlrev_b32 v7, 7, v7")
    for ks in range(4):
        a(f"v_xor_b32 v11, {2*ks}, v10\nv_lshl_add_u32 v{160+ks}, v11, 4, v7\nv_add_u32 v{165+ks}, 65536, v{160+ks}")
    a("v_bfe_u32 v7, v1, 2, 2\nv_lshl_add_u32 v10, v6, 3, v7\nv_lshlrev_b32 v10, 7, v10")
    a("v_bfe_u32 v11, v1, 4, 1\nv_lshlrev_b32 v11, 5, v11\nv_and_b32 v12, 3, v1\nv_lshl_add_u32 v11, v12, 3, v11")
    a("s_lshl_b32 s34, s43, 6\nv_add_u32 v11, s34, v11\nv_lshrrev_b32 v7, 1, v7\nv_lshlrev_b32 v7, 6, v7\nv_xor_b32 v11, v11, v7")
    a(f"s_mov_b32 s34, {WB}\nv_add3_u32 v164, v10, v11, s34")
    a(f"s_cmp_eq_u32 s28, 0\ns_cselect_b32 s34, 0, {f2u(1e-6)}")
    for r in range(16,80): a(f"v_mov_b32 v{r}, s34")
    a("s_lshl_b32 s34, s42, 5\nv_add_u32 v152, s34, v5\nv_mul_u32_u24 v10, 2341, v152\nv_lshrrev_b32 v10, 16, v10")
    a("v_mul_u32_u24 v11, 28, v10\nv_sub_u32 v11, v152, v11\nv_lshlrev_b32 v10, 17, v10\nv_lshl_add_u32 v10, v11, 4, v10\nv_lshl_add_u32 v153, v6, 9, v10")
    a("v_mul_u32_u24 v10, 7168, v6\nv_lshl_add_u32 v154, v152, 4, v10\nv_lshl_add_u32 v155, v6, 7, v154\nv_lshlrev_b32 v159, 2, v6")
    a("buffer_load_dwordx2 v[156:157], v9, s[44:47], 0 offen sc1")
    def rdl(k):
        u,ks=divmod(k,4); sl=u%7
        X=112+12*(k%3); W=X+8; xa=(160 if sl<4 else 165)+ks
        w=lambda uu: f"ds_read_b64_tr_b16 {v(W+2*uu,2)}, v164 offset:{(u%6)*8192+ks*2048+uu*512}"
        return [w(0),w(1),f"ds_read_b128 {v(X,4)}, v{xa} offset:{(sl%4)*16384}",f"ds_read_b128 {v(X+4,4)}, v{xa} offset:{(sl%4)*16384+4096}"]
    def swp(P): return [f"v_permlane32_swap_b32 v{P}, v{P+2}",f"v_permlane32_swap_b32 v{P+1}, v{P+3}",f"v_permlane32_swap_b32 v{P+4}, v{P+6}",f"v_permlane32_swap_b32 v{P+5}, v{P+7}"]
    def cvt(d,s_,n=8): return [f"v_cvt_pk_bf16_f32 v{d+j}, v{s_+2*j}, v{s_+1+2*j}" for j in range(n)]
    first={g[0] for g in GR}
    def mainloop(p,fills):
        stamp(a,1)
        a("s_barrier")
        stamp(a,2)
        for x in rdl(0)+rdl(1): a(x)
        for k in range(84):
            u,ks=divmod(k,4); part=u//7; X=112+12*(k%3); W=X+8; col=(part+1)%3; A=16+32*col
            z="0" if (col==2 and k%28==0) else None
            tr=(col==2) or (col==1 and p==1)
            mm=[mfma(A+16*t,X+4*t,W,z) if tr else mfma(A+16*t,W,X+4*t) for t in range(2)]
            nx=rdl(k+2) if k+2<84 else []
            bar=nx and (k+2)%4==0 and (k+2)//4 in first
            a(f"s_waitcnt lgkmcnt({0 if (bar or k==83) else 4})")
            if bar:
                if (k+2)//4<7: stamp(a,2+(k+2)//4,pst=True)
                a("s_barrier")
            f=fills[part-1] if part>0 and k%28>=2 else []
            n=CFG["fill"][p]
            a(mm[0])
            for x in nx[:2]: a(x)
            for x in f[:(n+1)//2]: a(x)
            del f[:(n+1)//2]
            a(mm[1])
            for x in nx[2:]: a(x)
            for x in f[:n//2]: a(x)
            del f[:n//2]
            if k%28==27:
                for x in f: a(x)
                del f[:]
        stamp(a,3); stamp(a,9,pst=True)
        L=lab("E"); lt=(p==0 and CFG.get("abe",1))
        if lt:
            a("s_nop 10")
            for x in fills[2]: a(x)
        a(f"s_lshl_b32 s62, s28, 3\ns_add_u32 s62, s62, s54\ns_lshl_b32 s62, s62, 4\ns_add_u32 s62, s62, s58\ns_lshl_b32 s62, s62, 7\ns_add_u32 s63, s62, {F7}\ns_add_u32 s62, s62, {F1}")
        a(f"s_waitcnt vmcnt({5 if lt else 0})"); get_nonce()
        a(f"s_barrier\ns_cmp_lg_u32 s31, 0\ns_cbranch_scc1 {L}")
        flag_store(a,63); a(f"{L}:")
        if not lt:
            a("s_nop 3")
            for x in fills[2]: a(x)
    ST="buffer_store_dwordx4 {}, v{}, s[24:27], s{} offen offset:{} sc1"
    a("s_cmp_eq_u32 s28, 0\ns_cbranch_scc0 L_PB")
    a(f"s_mov_b32 s34, {f2u(CS)}\ns_lshl_b32 s35, s41, 15\ns_lshl_b32 s37, s42, 11\ns_add_u32 s35, s35, s37\ns_add_u32 s35, s35, {KG}\ns_lshl_b32 s37, s41, 11\ns_add_u32 s37, s37, {VF}")
    a(f"s_lshl_b32 s38, s42, 6\ns_add_u32 s38, s38, s41\ns_lshl_b32 s38, s38, 2\ns_add_u32 s38, s38, {NRM}")
    def qk_epi(A,scale,noff,last):
        f=[]
        for t in range(2):
            T=176+8*t
            if scale: f+=[f"v_mul_f32 v{A+16*t+r}, s34, v{A+16*t+r}" for r in range(16)]
            f+=cvt(T,A+16*t)+[f"v_mul_f32 v{170+t}, v{A+16*t}, v{A+16*t}",f"v_fmac_f32 v{170+t}, v{A+16*t+1}, v{A+16*t+1}"]+swp(T)
            f+=[ST.format(v(T,4),8,35,0),ST.format(v(T+4,4),8,35,1024)+f"\ns_add_u32 s35, s35, {TBK if t==0 else last}"]
        for r in range(2,16): f+=[f"v_fmac_f32 v170, v{A+r}, v{A+r}",f"v_fmac_f32 v171, v{A+16+r}, v{A+16+r}"]
        f+=["s_nop 1\nv_permlane32_swap_b32 v170, v171\nv_add_f32 v170, v170, v171"]
        for m in ("quad_perm:[1,0,3,2]","quad_perm:[2,3,0,1]","row_half_mirror","row_mirror","row_bcast:15"):
            f+=[f"s_nop 1\nv_max_f32_dpp v170, v170, v170 {m} row_mask:{'0xa' if 'bcast' in m else '0xf'} bank_mask:0xf"]
        f+=[f"s_mov_b32 exec_lo, 0x80000000\ns_mov_b32 exec_hi, 0x80000000\nbuffer_store_dword v170, v159, s[24:27], s38 offen offset:{noff} sc1\ns_mov_b64 exec, -1"]
        return f
    fv=cvt(192,80)+[ST.format(v(192,4),153,37,0),ST.format(v(196,4),153,37,1024)]+cvt(200,96)+[ST.format(v(200,4),153,37,2048),ST.format(v(204,4),153,37,3072)]
    mainloop(0,[qk_epi(48,True,3584,(-KG-TBK)&0xffffffff),fv,qk_epi(16,False,0,0)])
    a("s_branch L_PE")
    a("L_PB:")
    a(f"s_mov_b32 s34, {f2u(LOG2E)}\nv_mov_b32 v170, {f2u(-1e-6*LOG2E)}\nv_mov_b32 v171, {f2u(1e-6)}")
    a(f"s_mul_i32 s43, s41, {TBS}\ns_add_u32 s35, s43, {PKT}\ns_lshl_b32 s37, s42, 11\ns_add_u32 s37, s37, s43\ns_add_u32 s37, s37, {PQG}\ns_mul_i32 s39, s41, {TBV}\ns_add_u32 s39, s39, {VT}")
    def phi(base,tmp,dst):
        f=[f"v_fma_f32 v{tmp+r}, v{base+r}, s34, v170" for r in range(16)]
        for r in range(16): f+=[f"v_exp_f32 v{tmp+r}, v{tmp+r} clamp",f"v_max_f32 v{base+r}, v{base+r}, v171"]
        return f+[f"v_add_f32 v{base+r}, v{base+r}, v{tmp+r}" for r in range(16)]+cvt(dst,base)
    fq=[]; fk=[]; fv=[]
    for t in range(2):
        T=192+8*t
        fq+=phi(16+16*t,176,T)+["s_nop 0"]+swp(T)+[ST.format(v(T,4),8,37,0),ST.format(v(T+4,4),8,37,1024)+f"\ns_add_u32 s37, s37, {TBS}"]
        fk+=phi(48+16*t,176,T)+[ST.format(v(T+4*m,4),154,35,0)+"\ns_add_u32 s35, s35, 14336" for m in range(2)]
        fv+=cvt(208+8*t,80+16*t)+[ST.format(v(208+8*t+4*m,4),155,39,0)+"\ns_add_u32 s39, s39, 14592" for m in range(2)]
    mainloop(1,[fk,fv,fq])
    a("L_PE:")
    stamp(a,4); stamp(a,10,pst=True)
    def final_flag():
        L=lab("F")
        a("s_waitcnt vmcnt(0)")
        a(f"s_lshl_b32 s35, s31, 2\nv_mov_b32 v10, 0\nv_add_u32 v11, s35, v10\nv_mov_b32 v14, s50\nds_write_b32 v11, v14\ns_waitcnt lgkmcnt(0)\nds_read_b128 v[16:19], v10\ns_waitcnt lgkmcnt(0)")
        a(f"v_xor_b32 v16, v16, v14\nv_xor_b32 v17, v17, v14\nv_xor_b32 v18, v18, v14\nv_xor_b32 v19, v19, v14\nv_or3_b32 v16, v16, v17, v18\nv_or_b32 v16, v16, v19\ns_nop 0\nv_readfirstlane_b32 s35, v16\ns_nop 0")
        a(f"s_cmp_lg_u32 s35, 0\ns_cbranch_scc1 {L}")
        flag_store(a,62); a(f"{L}:")
        stamp(a,5); stamp(a,11,pst=True)
    if not CFG["hoist"]: final_flag()
    a("s_branch L_ATT")
    a("L_IDLE:\ns_sub_u32 s34, s30, 28\ns_lshl_b32 s34, s34, 3\ns_add_u32 s34, s34, s31")
    if CFG["cpf"]:
        a(f"s_getpc_b64 s[38:39]\nL_PC:\ns_sub_u32 s38, s38, L_PC-{N}\ns_subb_u32 s39, s39, 0\ns_lshl_b32 s35, s34, 10\nv_add_u32 v16, s35, v8")
        for k in range(2):
            a(f"v_min_u32 v17, L_CEND-{N}-16, v16\nv_mov_b32 v19, s39\nv_add_co_u32 v18, vcc, s38, v17\ns_nop 1\nv_addc_co_u32 v19, vcc, 0, v19, vcc\nglobal_load_dwordx4 v[{24+4*k}:{27+4*k}], v[18:19], off\nv_add_u32 v16, 32768, v16")
    a("buffer_load_dwordx2 v[156:157], v9, s[44:47], 0 offen sc1\ns_mul_i32 s34, s34, 13312")
    srd(a,16,8,448*448*2); srd(a,20,14,448*448*2)
    for k in range(13):
        a(f"buffer_load_dwordx4 v[16:19], v8, s[16:19], s34 offen\nbuffer_load_dwordx4 v[20:23], v8, s[20:23], s34 offen\ns_add_u32 s34, s34, 1024")
    stamp(a,1); a("s_waitcnt vmcnt(0)"); get_nonce()
    stamp(a,2); stamp(a,3); stamp(a,4); stamp(a,5)
    a("L_ATT:")
    vm=VM(a)
    Q=[16,24]; O=[64,80]; S=[96,112]; P=[128,136]; R=192
    PL1="buffer_load_dwordx2 v[10:11], v158, s[24:27], 0 offen sc1"
    PC1="v_cmp_ne_u64 s[48:49], s[50:51], v[10:11]\ns_nop 0"
    PL3="buffer_load_dwordx4 v[32:35], v0, s[24:27], 0 offen "+CFG["p3f"]
    PC3="v_cmp_ne_u64 s[48:49], s[50:51], v[32:33]\nv_cmp_ne_u64 s[34:35], s[50:51], v[34:35]\ns_nop 0\ns_or_b64 s[48:49], s[48:49], s[34:35]"
    def ld(vm,kind,kt):
        kt0=kt
        base=R+16*(kt%4)+(0 if kind=="K" else 8)
        if CFG.get("nokv") and kt>=4: kt=kt%4
        a(f"s_xor_b32 s42, s70, {kt*TBK}" if kind=="K" else f"s_xor_b32 s42, s71, {kt*2048}")
        kt=kt0
        for m in range(2):
            vm.issue((kind,kt),f"buffer_load_dwordx4 {v(base+4*m,4)}, v{8 if kind=='K' else 5}, s[24:27], s42 offen offset:{m*1024} {CFG.get('kvf','sc1')}")
    def W(vmx,tag):
        if vmx: vmx.wait(tag)
        else: a("s_waitcnt vmcnt(0)")
    def I(vmx,tag,txt):
        if vmx: vmx.issue(tag,txt,True)
        else: a(txt)
    def i1_a(vmx):
        a("s_mul_i32 s33, s55, 7\ns_lshr_b32 s34, s33, 4\ns_add_u32 s34, s34, 448")
        a("v_and_b32 v3, 19, v1\nv_bfe_u32 v2, v1, 2, 1\nv_lshl_add_u32 v3, v2, 3, v3\nv_bfe_u32 v2, v1, 3, 1\nv_lshl_add_u32 v3, v2, 2, v3")
        a("v_lshrrev_b32 v5, 5, v1\nv_mul_u32_u24 v6, 7168, v5\nv_lshl_add_u32 v3, v3, 4, v6\nv_lshl_add_u32 v6, v5, 7, v6")
        a("v_and_b32 v5, 31, v1\nv_add_u32 v7, 20, v5\nv_lshrrev_b32 v7, 5, v7\nv_sub_u32 v2, v5, v7\nv_lshrrev_b32 v7, 4, v5\nv_sub_u32 v2, v2, v7\nv_add_u32 v7, 4, v5\nv_lshrrev_b32 v7, 5, v7\nv_sub_u32 v2, v2, v7")
        a("s_lshl_b32 s33, s33, 2\nv_add_u32 v2, s33, v2\nv_and_b32 v5, 11, v5\nv_cmp_eq_u32 s[48:49], 11, v5\nv_mov_b32 v7, s34\ns_nop 0\nv_cndmask_b32 v2, v2, v7, s[48:49]")
        a("v_lshl_add_u32 v2, v2, 4, v6")
    def i1_b(vmx):
        a(f"s_mul_i32 s34, s56, {4*TBS}\ns_lshr_b32 s35, s29, 2\ns_add_u32 s34, s34, s35\ns_add_u32 s34, s34, {PKT}\ns_mul_i32 s35, s56, {4*TBV}\ns_add_u32 s35, s35, {VT}")
        for i in range(8):
            I(vmx,"pay",f"buffer_load_dwordx4 {v(32+4*i,4)}, v3, s[24:27], s34 offen sc1")
            I(vmx,"pay",f"buffer_load_dwordx4 {v(144+4*i,4)}, v2, s[24:27], s35 offen sc1")
            if i<7: a("s_add_u32 s34, s34, 14336\ns_add_u32 s35, s35, 14592")
    def i1_c(vmx):
        W(vmx,"pay")
        for i in range(8): a(mfma(176,32+4*i,144+4*i,"0" if i==0 else None))
    def i1_d(vmx):
        a(f"s_lshl_b32 s42, s55, 12\ns_add_u32 s42, s42, {KVS}")
        for r in range(16): I(vmx,"at",f"buffer_atomic_add_f32 v{176+r}, v13, s[24:27], s42 offen offset:{r*256}")
    def i1_e(vmx):
        if CFG["late"]: W(vmx,"at")
        a(f"s_lshl_b32 s42, s55, 7\ns_add_u32 s42, s42, {CNT}\nv_mov_b32 v7, 1\ns_mov_b64 exec, 1")
        I(vmx,"cn","buffer_atomic_add v7, v9, s[24:27], s42 offen"); a("s_mov_b64 exec, -1")
    PL4="buffer_load_dword v14, v9, s[24:27], s33 offen "+CFG["p4f"]+"\nbuffer_load_dwordx2 v[6:7], v10, s[24:27], 0 offen "+CFG["p4f"]
    def i2_a(vmx):
        a(f"s_mul_i32 s33, s55, 7\ns_lshr_b32 s34, s33, 4\ns_add_u32 s35, s33, 6\ns_lshr_b32 s35, s35, 4\ns_sub_u32 s35, s35, s34\ns_lshl_b32 s35, s35, 11")
        a(f"s_lshl_b32 s34, s34, 11\ns_lshl_b32 s33, s56, {CFG['fs']}\ns_add_u32 s34, s34, s33\ns_add_u32 s34, s34, {F2}\nv_and_b32 v10, 1, v1\nv_mul_u32_u24 v10, s35, v10\nv_add_u32 v10, s34, v10")
        a(f"s_lshl_b32 s33, s55, 7\ns_add_u32 s33, s33, {CNT}")
        for x in PL4.split("\n"): I(vmx,"p4",x)
    def i2_b(vmx):
        W(vmx,"p4"); spin(a,"v_cmp_gt_u32 s[48:49], 16, v14\nv_cmp_ne_u64 s[34:35], s[50:51], v[6:7]\ns_nop 0\ns_or_b64 s[48:49], s[48:49], s[34:35]",PL4)
        a(f"s_lshl_b32 s34, s55, 12\ns_add_u32 s34, s34, {KVS}\ns_lshl_b32 s35, s56, 2\ns_add_u32 s35, s35, s60\ns_mul_i32 s35, s35, {TBS}\ns_add_u32 s35, s35, s29\ns_add_u32 s35, s35, {PQG}")
        for r in range(16): I(vmx,"kv",f"buffer_load_dword v{144+r}, v13, s[24:27], s34 offen offset:{r*256} sc1")
        for m in range(2): I(vmx,"kv",f"buffer_load_dwordx4 {v(168+4*m,4)}, v8, s[24:27], s35 offen offset:{m*1024} sc1")
    def qmask(b):
        a(f"v_cndmask_b32 v{b}, v{b}, 0, s[38:39]\nv_cndmask_b32 v{b+1}, v{b+1}, 0, s[38:39]\nv_cndmask_b32 v{b+6}, v{b+6}, 0, s[40:41]\nv_cndmask_b32 v{b+7}, v{b+7}, 0, s[40:41]")
    def i2_c(vmx):
        W(vmx,"kv")
        for j in range(8): a(f"v_cvt_pk_bf16_f32 v{160+j}, v{144+2*j}, v{145+2*j}")
        qmask(168); a("s_nop 1")
        a(mfma(176,160,168,"0")); a(mfma(176,164,172))
    def i2_d(vmx):
        a(f"v_add_f32 v15, {f2u(1e-6)}, v183\nv_rcp_f32 v15, v15\ns_nop 0")
        for r in range(16): a(f"v_mul_f32 v{176+r}, v{176+r}, v15" if r%8!=7 else f"v_mov_b32 v{176+r}, {TAG}")
        for j in range(8): a(f"v_cvt_pk_bf16_f32 v{160+j}, v{176+2*j}, v{177+2*j}")
        for m in range(2): I(vmx,"ob",f"buffer_store_dwordx4 {v(160+4*m,4)}, v8, s[24:27], s58 offen offset:{m*1024} {CFG['osf']}")
    def f6(vmx):
        a(f"s_lshl_b32 s34, s56, 4\ns_add_u32 s34, s34, s55\ns_lshl_b32 s34, s34, 3\ns_add_u32 s34, s34, s31\ns_lshl_b32 s34, s34, 3\ns_add_u32 s34, s34, {F6}")
        if vmx: vmx.wait("clr")
        flag_store(a,34,vmx)
    def special(f,vmx):
        L=lab("S"); a(f"s_cbranch_vccz {L}"); f(vmx); a(f"{L}:")
    def ofr(p,F):
        return "\n".join(f"buffer_load_dwordx4 {v(F+4*f,4)}, v8, s[24:27], s{62+f//4} offen offset:{(f%4)*1024} {CFG['off']}" for f in range(8))
    def ofr_addr(p):
        a(f"s_lshl_b32 s62, s53, 1\ns_add_u32 s62, s62, s57\ns_lshl_b32 s62, s62, 2\ns_lshr_b32 s63, s31, 1\ns_add_u32 s62, s62, s63\ns_lshl_b32 s62, s62, 13\ns_add_u32 s62, s62, {OF+p*2*MB}\ns_add_u32 s63, s62, 4096")
    if CFG.get("ep",1): a("s_setprio 3")
    if CFG["wop"]==2: srd(a,16,8,448*448*2); srd(a,20,14,448*448*2)
    def wodma(k,vmx):
        p,j=divmod(k,7); b=(WOA if p else WOB)+j*8192
        a(f"s_add_u32 m0, s36, {b}\ns_mov_b32 s43, {j*64*896}")
        x=f"buffer_load_dwordx4 v4, s[{20-4*p}:{23-4*p}], s43 offen lds"
        if vmx: vmx.issue("wo",x)
        else: a(x)
    a("s_cmp_eq_u32 s31, 7\ns_cselect_b64 vcc, -1, 0")
    a(f"v_and_b32 v2, 1, v1\nv_lshlrev_b32 v2, 4, v2\ns_lshl_b32 s34, s56, 7\ns_add_u32 s34, s34, {(F1-F7)&0xffffffff}\nv_readlane_b32 s35, v158, 0\nv_readlane_b32 s33, v158, 16\ns_nop 0\ns_sub_u32 s33, s33, s35\ns_add_u32 s34, s34, s35\nv_lshrrev_b32 v2, 4, v2\nv_mul_u32_u24 v2, s33, v2\nv_add_u32 v2, s34, v2")
    special(i1_a,vm)
    a("s_lshl_b32 s34, s56, 2\ns_lshl_b32 s35, s61, 1\ns_add_u32 s34, s34, s35\ns_lshr_b32 s35, s60, 1\ns_add_u32 s34, s34, s35\ns_lshl_b32 s34, s34, 4\ns_add_u32 s34, s34, s55")
    a(f"s_lshl_b32 s34, s34, 1\ns_and_b32 s35, s60, 1\ns_add_u32 s34, s34, s35\ns_lshl_b32 s34, s34, 10\ns_add_u32 s59, s34, {OF}")
    a(f"s_lshl_b32 s34, s56, 2\ns_add_u32 s34, s34, s60\ns_lshl_b32 s34, s34, 4\ns_add_u32 s34, s34, s55\ns_lshl_b32 s34, s34, 11\ns_add_u32 s34, s34, {OF+2*MB}\ns_cmp_lt_u32 s31, 4\ns_cselect_b32 s58, s34, {WS_SIZE}")
    a("v_and_b32 v5, 31, v1\nv_add_u32 v7, 20, v5\nv_lshrrev_b32 v7, 5, v7\nv_sub_u32 v6, v5, v7\nv_lshrrev_b32 v7, 4, v5\nv_sub_u32 v6, v6, v7\nv_add_u32 v7, 4, v5\nv_lshrrev_b32 v7, 5, v7\nv_sub_u32 v6, v6, v7")
    a("v_and_b32 v5, 11, v5\nv_cmp_eq_u32 s[48:49], 11, v5\nv_lshrrev_b32 v5, 5, v1\nv_lshlrev_b32 v5, 9, v5\nv_cndmask_b32 v6, v6, 28, s[48:49]\nv_lshl_add_u32 v5, v6, 4, v5")
    a(f"s_mul_i32 s33, s55, 7\ns_lshr_b32 s34, s33, 3\ns_add_u32 s35, s33, 6\ns_lshr_b32 s35, s35, 3\ns_lshl_b32 s34, s34, 8\ns_lshl_b32 s35, s35, 8")
    a(f"s_add_u32 s34, s34, {NRM}\ns_add_u32 s35, s35, {NRM}\ns_lshl_b32 s37, s56, 4\nv_and_b32 v12, 12, v13\nv_add_u32 v12, s37, v12")
    a(f"s_lshl_b32 s37, s56, 2\ns_lshl_b32 s38, s61, 1\ns_add_u32 s37, s37, s38\ns_lshl_b32 s37, s37, 15\ns_add_u32 s37, s37, s29\ns_add_u32 s38, s37, {TBK}")
    if CFG["hoist"]:
        a("s_cmp_ge_u32 s31, 4\ns_cbranch_scc1 L_NF\ns_cmp_ge_u32 s30, 28\ns_cbranch_scc1 L_B1\ns_mov_b32 s63, s35"); final_flag(); a("s_mov_b32 s35, s63\ns_branch L_B1\nL_NF:")
    a("s_cmp_eq_u32 s31, 4\ns_cbranch_scc1 L_B1\ns_cmp_eq_u32 s31, 5\ns_cselect_b64 s[48:49], -1, 0\nv_cndmask_b32 v158, v158, v2, s[48:49]\ns_mov_b32 exec_hi, vcc_hi")
    PL="buffer_load_dwordx2 v[10:11], v158, s[24:27], 0 offen "+CFG["pf"]
    a(PL+"\ns_waitcnt vmcnt(0)"); spin(a,PC1,PL); a("s_mov_b64 exec, -1")
    stamp(a,6)
    a("s_cmp_lg_u32 s31, 6\ns_cbranch_scc1 L_N6")
    if CFG.get("wrm",0):
        a(f"s_lshl_b32 s42, s56, 15\ns_add_u32 s42, s42, s29\ns_add_u32 s42, s42, {KG}\ns_lshl_b32 s43, s55, 6\ns_add_u32 s43, s43, s56\ns_lshl_b32 s43, s43, 11\ns_add_u32 s43, s43, {VF}")
        for k in range(4):
            for m in range(2): a(f"buffer_load_dwordx4 v[32:35], v8, s[24:27], s42 offen offset:{m*1024} sc1\nbuffer_load_dwordx4 v[40:43], v8, s[24:27], s43 offen offset:{m*1024} sc1")
            if k<3: a(f"s_add_u32 s42, s42, {16<<15}\ns_add_u32 s43, s43, {16<<11}")
    a("L_N6:\ns_cbranch_vccz L_B1\ns_mov_b64 s[62:63], s[34:35]")
    i1_b(None)
    if not CFG["late"]: i1_c(None); a("s_nop 15\ns_nop 3"); i1_d(None)
    a("s_mov_b64 s[34:35], s[62:63]\nL_B1:\ns_barrier")
    if CFG.get("x7"): stamp(a,3)
    vm.issue("nk","buffer_load_dword v10, v13, s[24:27], s34 offen offset:3584 sc1")
    vm.issue("nk","buffer_load_dword v11, v13, s[24:27], s35 offen offset:3584 sc1")
    vm.issue("n","buffer_load_dword v14, v12, s[24:27], s34 offen sc1")
    vm.issue("n","buffer_load_dword v15, v12, s[24:27], s35 offen sc1")
    for qb in range(2):
        for m in range(2):
            vm.issue("q",f"buffer_load_dwordx4 {v(Q[qb]+4*m,4)}, v8, s[24:27], s{37+qb} offen offset:{m*1024} sc1")
    ld(vm,"K",0)
    if CFG.get("pb",1): a("s_barrier")
    PRO=(("K",1),("V",0))+((("V",1),("K",2),("K",3)),(("K",2),),())[CFG["pro"]]
    for x in PRO: ld(vm,*x)
    def w7(x):
        a(f"s_waitcnt vmcnt({10+2*len(PRO)})")
        for i in range(8): a(mfma(176,32+4*i,144+4*i,"0" if i==0 else None))
        a("s_nop 15\ns_nop 3"); i1_d(x)
    if CFG['late']: special(w7,vm)
    if CFG.get("x7"): stamp(a,4)
    def clr(vmx):
        vmx.issue("clr","buffer_store_dwordx4 v[36:39], v8, s[24:27], s59 offen sc1")
        for m in range(2): vmx.issue("clr",f"buffer_store_dwordx4 v[36:39], v8, s[24:27], s58 offen offset:{m*1024} sc1")
    SCH=()
    LSCH={0:{CFG.get("ct",1):(("K",CFG.get("ct",1)//2+4),"C")},1:{0:(("V",1),("K",3)),1:(("V",2),("K",4)),2:(("V",3),),3:(("K",5),"C")},
          2:{0:(("K",2),("V",1)),1:(("K",3),("V",2)),2:(("K",4),("V",3)),3:(("K",5),"C")}}[CFG["pro"]]
    def sch(l,vmx):
        for x in l:
            if x=="C": clr(vmx)
            else: ld(vmx,*x)
    for r in range(4): a(f"v_mov_b32 v{36+r}, 0")
    sch(SCH,vm)
    if CFG["stop"]=="P":
        a("s_waitcnt vmcnt(0)"); stamp_out(a,7); a("L_END:\ns_endpgm"); return a
    a("s_bitcmp1_b32 s55, 0\ns_cselect_b32 s38, -1, 0\ns_mov_b32 s39, 0\ns_mov_b32 s40, 0\ns_cselect_b32 s41, 0, -1")
    vm.wait("nk")
    a("v_add_f32 v10, v10, v11\ns_nop 1")
    for m in ("quad_perm:[1,0,3,2]","quad_perm:[2,3,0,1]","row_half_mirror","row_mirror"):
        a(f"v_max_f32_dpp v10, v10, v10 {m} row_mask:0xf bank_mask:0xf\ns_nop 1")
    a("v_readlane_b32 s32, v10, 0\nv_readlane_b32 s33, v10, 16\nv_readlane_b32 s42, v10, 32\nv_readlane_b32 s43, v10, 48\ns_nop 1")
    a("s_max_u32 s32, s32, s33\ns_max_u32 s42, s42, s43\ns_max_u32 s32, s32, s42")
    vm.wait("n")
    if CFG.get("x7"): stamp(a,5)
    if not CFG["late"]: special(i1_e,vm)
    a("v_add_f32 v14, v14, v15\ns_nop 1")
    for m in ("quad_perm:[1,0,3,2]","quad_perm:[2,3,0,1]"):
        a(f"v_max_f32_dpp v14, v14, v14 {m} row_mask:0xf bank_mask:0xf\ns_nop 1")
    a("v_mul_f32 v14, s32, v14\ns_nop 0\nv_readfirstlane_b32 s32, v14\ns_nop 1")
    vm.wait("q"); qmask(Q[0]); qmask(Q[1])
    a(f"s_cmp_le_u32 s32, {f2u(TH*TH)}\ns_cbranch_scc0 L_SLOW")
    def Kf(kt,m): return R+16*(kt%4)+4*m
    def Vf(kt,m): return R+16*(kt%4)+8+4*m
    NT=32
    def qk(i,m):
        kt,qb=divmod(i,2)
        if m==0 and qb==0: vm.wait(("K",kt))
        a(mfma(S[qb],Kf(kt,m),Q[qb]+4*m,"0" if m==0 else None))
    def pv(i,m):
        kt,qb=divmod(i,2)
        if m==0 and qb==0: vm.wait(("V",kt))
        a(mfma(O[qb],Vf(kt,m),P[qb]+4*m,"0" if (kt==0 and m==0) else None))
    def e(i,r): qb=i%2; return f"v_exp_f32 v{S[qb]+r}, v{S[qb]+r}"
    def c(i,j): qb=i%2; return f"v_cvt_pk_bf16_f32 v{P[qb]+j}, v{S[qb]+2*j}, v{S[qb]+2*j+1}"
    ins=dict(zip(CFG['ins'],(i2_a,i2_b,i2_c,i2_d))); t2=CFG['ins'][0]
    if CFG.get("noB"): ins={}
    stamp(a,7)
    a("s_setprio 3")
    qk(0,0); qk(0,1)
    a("s_nop 11")
    for i in range(NT):
        seq=[e(i,0),e(i,1),e(i,2),c(i,0),e(i,3),e(i,4),c(i,1),e(i,5),e(i,6),c(i,2),e(i,7),e(i,8),c(i,3),e(i,9),e(i,10),c(i,4),e(i,11),e(i,12),c(i,5),e(i,13),e(i,14),c(i,6),e(i,15)]
        if i in CFG["prio"]: a(f"s_setprio {2-CFG['prio'].index(i)}")
        a(seq[0])
        if i>0: a(c(i-1,7))
        if i+1<NT: qk(i+1,0)
        for x in seq[1:5]: a(x)
        if i+1<NT: qk(i+1,1)
        for x in seq[5:11]: a(x)
        if i>0: pv(i-1,0)
        if i==t2:
            vm.drop_sp(); a("s_cmp_lt_u32 s31, 4\ns_cselect_b64 vcc, -1, 0")
        if i in ins: special(ins[i],vm)
        j=i//2
        if i in LSCH: sch(LSCH[i],vm)
        elif i%2==0:
            if j+2<16: ld(vm,"V",j+2)
        else:
            if j+4<16: ld(vm,"K",j+4)
        if CFG["late"] and i==CFG["ie"]: special(i1_e,vm)
        if CFG["wop"]==2 and i>=CFG["wo0"] and (i-CFG["wo0"])%CFG["wos"]==0 and (i-CFG["wo0"])//CFG["wos"]<14: wodma((i-CFG["wo0"])//CFG["wos"],vm)
        if i==CFG["f6"]: f6(vm)
        if i==CFG["p3"]: vm.issue("p3",PL3)
        if i==30:
            vm.drop_sp(); vm.wait("p3"); spin(a,PC3,PL3)
        for x in seq[11:17]: a(x)
        if i>0: pv(i-1,1)
        for x in seq[17:23]: a(x)
    a("s_nop 0"); a(c(NT-1,7)); a("s_nop 1")
    pv(NT-1,0); pv(NT-1,1)
    a("L_TAIL:")
    stamp(a,8)
    def red_write(B,rank,dmul,dadd,base):
        for g in range(4):
            L=lab("R"); E=lab("R")
            a(f"s_sub_u32 s34, s{rank}, {g+1}\ns_and_b32 s34, s34, 3\ns_cmp_eq_u32 s34, 3\ns_cbranch_scc1 {L}")
            a(f"s_lshl_b32 s34, s34, 11\ns_mul_i32 s35, s{dadd}, 6144\ns_add_u32 s34, s34, s35\ns_add_u32 s34, s34, {base+g*dmul*6144}\nv_add_u32 v10, s34, v8")
            a(f"ds_write_b128 v10, {v(B+8*g,4)}\nds_write_b128 v10, {v(B+8*g+4,4)} offset:1024\ns_branch {E}\n{L}:")
            for r in range(8): a(f"v_mov_b32 v{96+r}, v{B+8*g+r}")
            a(f"{E}:")
    def red_read(base):
        a(f"s_mul_i32 s34, s31, 6144\ns_add_u32 s34, s34, {base}\nv_add_u32 v10, s34, v8")
        for q in range(6): a(f"ds_read_b128 {v(104+4*q,4)}, v10 offset:{q*1024}")
        a("s_waitcnt lgkmcnt(2)")
        for r in range(8): a(f"v_add_f32 v{96+r}, v{96+r}, v{104+r}")
        a("s_waitcnt lgkmcnt(0)")
        for r in range(8): a(f"v_add_f32 v{112+r}, v{112+r}, v{120+r}")
        for r in range(8): a(f"v_add_f32 v{96+r}, v{96+r}, v{112+r}")
    a("s_lshl_b32 s33, s61, 2\ns_lshr_b32 s32, s31, 1")
    a("v_lshrrev_b32 v6, 5, v1\nv_bfe_u32 v7, v1, 2, 2\nv_lshl_add_u32 v11, v6, 2, v7\nv_min_u32 v7, 2, v7\nv_mad_u32_u24 v12, v6, 3, v7\nv_add_u32 v12, 8, v12")
    a("v_bfe_u32 v5, v1, 4, 1\nv_lshlrev_b32 v5, 5, v5\nv_and_b32 v7, 3, v1\nv_lshl_add_u32 v5, v7, 3, v5\ns_mul_i32 s34, s32, 14336\ns_add_u32 s34, s34, %d\nv_add_u32 v5, s34, v5"%WOB)
    for m in range(2):
        for u in range(2):
            d=240+2*m+u
            if m: a(f"v_add_u32 v{11+u}, 14, v{11+u}")
            a(f"v_bfe_u32 v7, v{11+u}, 1, 1\nv_lshl_add_u32 v{d}, v{11+u}, 7, v5\nv_lshl_add_u32 v{d}, v7, 6, v{d}\nv_xor_b32 v{d+4}, 64, v{d}")
    red_write(64,60,1,33,EX)
    a("s_lshl_b32 s34, s53, 1\ns_add_u32 s34, s34, s57\ns_lshl_b32 s34, s34, 5\nv_and_b32 v5, 31, v1\nv_add_u32 v5, s34, v5\nv_mul_u32_u24 v5, 1792, v5\nv_lshl_add_u32 v248, v6, 4, v5")
    a("s_lshl_b32 s70, s54, 7\ns_lshl_b32 s34, s32, 5\ns_add_u32 s70, s70, s34\ns_add_u32 s71, s70, 896")
    srd(a,44,64,2048*896*2)
    ofr_addr(1)
    for x in ofr(1,144).split("\n"): vm.issue("of",x)
    a("s_waitcnt vmcnt(8) lgkmcnt(0)\ns_barrier")
    red_read(EX)
    a("v_rcp_f32 v11, v103\ns_nop 0")
    for r in range(7): a(f"v_mul_f32 v{96+r}, v{96+r}, v11")
    a(f"v_mov_b32 v103, {TAG}")
    for j in range(4): a(f"v_cvt_pk_bf16_f32 v{104+j}, v{96+2*j}, v{97+2*j}")
    vm.issue("oa","buffer_store_dwordx4 v[104:107], v8, s[24:27], s59 offen "+CFG["osf"])
    stamp(a,9)
    a("s_cmp_ge_u32 s30, 28\ns_cbranch_scc1 L_FIN")
    if CFG["stop"]=="ATT": a("s_branch L_FIN")
    def tagcmp(F):
        return (f"v_min3_u32 v11, v{F+3}, v{F+7}, v{F+11}\nv_min3_u32 v12, v{F+15}, v{F+19}, v{F+23}\nv_min3_u32 v11, v11, v{F+27}, v{F+31}\nv_min_u32 v11, v11, v12\n"
                f"v_cmp_gt_u32 s[48:49], s42, v11\ns_nop 0")
    def oproj(F):
        def rd(f,fs):
            hl,m=divmod(f,2)
            for nt in range(2):
                for u in range(2): a(f"ds_read_b64_tr_b16 {v(224+8*fs+4*nt+2*u,2)}, v{240+4*nt+2*m+u} offset:{hl*3584}")
        rd(0,0)
        return rd
    def oproj2(F,rd):
        for f in range(8):
            fs=f&1
            if f<7: rd(f+1,fs^1); a("s_waitcnt lgkmcnt(4)")
            else: a("s_waitcnt lgkmcnt(0)")
            a(mfma(32,224+8*fs,F+4*f,"0" if f==0 else None)); a(mfma(48,228+8*fs,F+4*f,"0" if f==0 else None))
    def ostore(so):
        for j in range(4): a(f"v_cvt_pk_bf16_f32 v{104+j}, v{96+2*j}, v{97+2*j}")
        a(f"s_nop 1\nv_permlane32_swap_b32 v104, v106\nv_permlane32_swap_b32 v105, v107\nbuffer_store_dwordx4 v[104:107], v248, s[44:47], s{so} offen {CFG.get('of2','')}")
    a(f"s_mov_b32 s42, {TAG}")
    rd=oproj(144)
    vm.wait("of"); spin(a,tagcmp(144),ofr(1,144))
    oproj2(144,rd)
    ofr_addr(0)
    for r in range(8): a(f"v_subrev_u32 v{240+r}, {WOB-WOA}, v{240+r}")
    a("s_barrier")
    red_write(32,32,2,57,EX)
    a(ofr(0,192))
    a("s_waitcnt lgkmcnt(0)\ns_barrier")
    red_read(EX); ostore(71)
    stamp(a,10)
    rd=oproj(192)
    a("s_waitcnt vmcnt(1)"); spin(a,tagcmp(192),ofr(0,192))
    stamp(a,11)
    oproj2(192,rd)
    a("s_nop 11")
    red_write(32,32,2,57,WOB)
    a("s_waitcnt lgkmcnt(0)\ns_barrier")
    red_read(WOB); ostore(70)
    a("L_FIN:")
    stamp_out(a,12)
    a("L_END:\ns_endpgm")
    a("L_SLOW:"); clr(VM(a)); a("s_waitcnt vmcnt(0)"); f6(None)
    if CFG["wop"]==2:
        for k in range(14): wodma(k,None)
    if CFG["late"]: special(i1_e,None)
    a("L_S1:\nv_mov_b32 v10, 0xff800000\nv_mov_b32 v11, 0xff800000\ns_mov_b32 s43, 0\nL_S2:\ns_lshl_b32 s42, s43, 15\ns_xor_b32 s42, s42, s70")
    a(f"buffer_load_dwordx4 v[192:195], v8, s[24:27], s42 offen sc1\nbuffer_load_dwordx4 v[196:199], v8, s[24:27], s42 offen offset:1024 sc1\ns_waitcnt vmcnt(0)")
    for qb in range(2):
        a(mfma(S[qb],192,Q[qb],"0")); a(mfma(S[qb],196,Q[qb]+4))
    a("s_nop 15")
    for qb in range(2):
        for r in range(0,16,2): a(f"v_max3_f32 v{10+qb}, v{10+qb}, v{S[qb]+r}, v{S[qb]+r+1}")
    a("s_add_u32 s43, s43, 1\ns_cmp_lg_u32 s43, 16\ns_cbranch_scc1 L_S2")
    a("v_mov_b32 v14, v10\nv_mov_b32 v15, v11\ns_nop 1\nv_permlane32_swap_b32 v10, v14\nv_permlane32_swap_b32 v11, v15")
    a("v_max_f32 v10, v10, v14\nv_max_f32 v11, v11, v15")
    a(f"s_barrier\ns_lshl_b32 s34, s31, 9\ns_add_u32 s34, s34, {EX}\nv_add_u32 v12, s34, v13\nds_write_b32 v12, v10\nds_write_b32 v12, v11 offset:256")
    a(f"s_lshl_b32 s34, s61, 11\ns_add_u32 s34, s34, {EX}\nv_add_u32 v12, s34, v13\ns_waitcnt lgkmcnt(0)\ns_barrier")
    for k in range(4): a(f"ds_read_b32 v{192+k}, v12 offset:{k*512}\nds_read_b32 v{196+k}, v12 offset:{k*512+256}")
    a("s_waitcnt lgkmcnt(0)\ns_barrier")
    for qb in range(2):
        b=192+4*qb
        a(f"v_max3_f32 v{b}, v{b}, v{b+1}, v{b+2}\nv_max_f32 v{10+qb}, v{b}, v{b+3}")
    for r in range(64,96): a(f"v_mov_b32 v{r}, 0")
    a("s_mov_b32 s43, 0\nL_S3:\ns_lshl_b32 s42, s43, 15\ns_xor_b32 s42, s42, s70\ns_lshl_b32 s37, s43, 11\ns_xor_b32 s37, s37, s71")
    a(f"buffer_load_dwordx4 v[192:195], v8, s[24:27], s42 offen sc1\nbuffer_load_dwordx4 v[196:199], v8, s[24:27], s42 offen offset:1024 sc1")
    a(f"buffer_load_dwordx4 v[200:203], v5, s[24:27], s37 offen sc1\nbuffer_load_dwordx4 v[204:207], v5, s[24:27], s37 offen offset:1024 sc1\ns_waitcnt vmcnt(0)")
    for qb in range(2):
        a(mfma(S[qb],192,Q[qb],"0")); a(mfma(S[qb],196,Q[qb]+4))
    a("s_nop 15")
    for qb in range(2):
        for r in range(16): a(f"v_sub_f32 v{S[qb]+r}, v{S[qb]+r}, v{10+qb}")
        for r in range(16): a(e(qb,r))
        a("s_nop 0")
        for j in range(8): a(c(qb,j))
    a("s_nop 1")
    for qb in range(2):
        a(mfma(O[qb],200,P[qb])); a(mfma(O[qb],204,P[qb]+4))
    a("s_add_u32 s43, s43, 1\ns_cmp_lg_u32 s43, 16\ns_cbranch_scc1 L_S3")
    a("s_cmp_lt_u32 s31, 4\ns_cbranch_scc0 L_S4")
    i2_a(None); i2_b(None); i2_c(None); a("s_nop 15"); i2_d(None)
    a("L_S4:"); a(PL3); a("s_waitcnt vmcnt(0)"); spin(a,PC3,PL3); a("s_branch L_TAIL\nL_CEND:")
    return a
def emit(path):
    uid[0]=0
    a=gen(); N="concat_heads__softmax_full_mha__linear_attn_block__prompt_kernel"
    for e_ in check(a.lines,"fused"): print("HAZARD",e_)
    hdr="; generated by work/gen/fused.py (hand-written generator)\n; @launch grid=(256,1,1) block=(512,1,1) lds=163840\n"
    kd=f""".section .rodata,"a"
.p2align 6
.amdhsa_kernel {N}
  .amdhsa_next_free_vgpr 256
  .amdhsa_next_free_sgpr 102
  .amdhsa_accum_offset 256
  .amdhsa_group_segment_fixed_size 0
  .amdhsa_kernarg_size 72
  .amdhsa_user_sgpr_count 2
  .amdhsa_user_sgpr_kernarg_segment_ptr 1
  .amdhsa_system_sgpr_workgroup_id_x 1
.end_amdhsa_kernel
"""
    open(path,"w").write(hdr+'.amdgcn_target "amdgcn-amd-amdhsa--gfx950"\n.text\n'+a.text()+kd)
if __name__=="__main__":
    if "--instr" in sys.argv: INSTR=True
    for x in sys.argv[2:]:
        if "=" in x:
            k,val=x.split("="); CFG[k]=eval(val)
    emit(sys.argv[1])
```

```python
import struct, sys
from asmlib import *
def f2u(x): return struct.unpack("<I",struct.pack("<f",x))[0]
MB=1<<20
TBS=28672
QG=0; KG=2*MB; VF=4*MB; PQG=6*MB; PKT=8*MB; VT=10*MB; OF=12*MB
TBV=4*456*16
KVS=16*MB
CNT=KVS+65536
NRM=16*MB+131072
FL=17*MB
F1=FL; F2=FL+128*128; F6=FL+256*128; F7=FL+512*128
TBK=32768
WS_SIZE=18*MB
EX=0; WOA=49152; WOB=106496
TAG=0x00800000
CFG=dict(ins=(12,17,23,24),rot=1,la=1,fill=(6,8),f6=9,f7=16,cpf=1,p3=22,prio=(16,26,30),stop=None,sleep=4,wo0=3,late=0,wop=2,wos=2,nq=1,hoist=1,ie=4,pro=2,fs=7,pw=6,psl2=4,pf='sc0 sc1',sf='sc0 sc1',p3f='sc1',p4f='sc1',off='sc1',osf='sc1')
LOG2E=1.4426950408889634
CS=28**-0.5*LOG2E
TH=60.0
SPIN=20000
MF="v_mfma_f32_32x32x16_bf16"
INSTR=False
STAMP=32*MB
def mfma(d,a,b,c=None):
    return f"{MF} {v(d,16)}, {v(a,4)}, {v(b,4)}, {v(d,16) if c is None else c}"
def srd(a,d,base,size):
    a(f"s_mov_b32 s{d}, s{base}\ns_and_b32 s{d+1}, s{base+1}, 0xffff\ns_mov_b32 s{d+2}, {size}\ns_mov_b32 s{d+3}, 0x20000")
class VM:
    def __init__(self,a): self.a=a; self.q=[]; self.done=0
    def issue(self,tag,txt,sp=False): self.a(txt); self.q.append((tag,sp))
    def wait(self,tag,extra=""):
        idx=max(i for i,t in enumerate(self.q) if t[0]==tag)
        sp=self.q[idx][1]
        ns=min(63,len(self.q)-1-idx); nb=min(63,sum(1 for t in self.q[idx+1:] if not t[1]))
        if sp:
            self.a(f"s_waitcnt vmcnt({ns}) {extra}"); return
        if idx<self.done:
            if extra: self.a(f"s_waitcnt {extra}")
            return
        self.done=idx+1
        if ns==nb: self.a(f"s_waitcnt vmcnt({nb}) {extra}")
        else:
            L=lab("W"); self.a(f"s_waitcnt vmcnt({ns}) {extra}\ns_cbranch_vccnz {L}\ns_waitcnt vmcnt({nb})\n{L}:")
    def drop_sp(self):
        nd=sum(1 for t in self.q[:self.done] if not t[1])
        self.q=[t for t in self.q if not t[1]]; self.done=nd
NSTAMP=12
def stamp(a,i,real=False,pst=False):
    if not INSTR: return
    if CFG.get("pst") and 2<i<12 and not pst: return
    if pst and not CFG.get("pst"): return
    a(f"s_memtime s[{72+2*i}:{73+2*i}]")
    if real: a(f"s_memrealtime s[{98+2*(0 if i==0 else 1)}:{99+2*(0 if i==0 else 1)}]")
    a("s_waitcnt lgkmcnt(0)")
def stamp_out(a,n):
    if not INSTR: return
    a("s_waitcnt vmcnt(0)")
    stamp(a,n,True)
    a("s_mov_b64 exec, 1")
    a(f"s_lshl_b32 s62, s2, 3\ns_add_u32 s62, s62, s31\ns_lshl_b32 s62, s62, 7\ns_add_u32 s62, s62, {STAMP}\ns_mov_b32 s26, {64*MB}\nv_mov_b32 v0, 0")
    for i in range(n+1):
        a(f"v_mov_b32 v1, s{72+2*i}\nbuffer_store_dword v1, v0, s[24:27], s62 offen offset:{4*i}")
    a("v_mov_b32 v1, s98\nbuffer_store_dword v1, v0, s[24:27], s62 offen offset:64\nv_mov_b32 v1, s100\nbuffer_store_dword v1, v0, s[24:27], s62 offen offset:68")
uid=[0]
def lab(p):
    uid[0]+=1; return f"L{p}{uid[0]}"
def spin(a, cmp, loads):
    L=lab("P"); D=lab("D")
    a(f"s_mov_b32 s52, {SPIN}\n{L}:\n{cmp}\ns_cmp_eq_u64 s[48:49], 0\ns_cbranch_scc1 {D}\ns_sub_u32 s52, s52, 1\ns_cbranch_scc1 {D}")
    a(f"s_sleep {CFG['sleep']}\n{loads}\ns_waitcnt vmcnt(0)\ns_branch {L}\n{D}:")
def flag_store(a, soff, vm=None, t=14):
    a(f"v_mov_b32 v{t}, s50\nv_mov_b32 v{t+1}, s51\ns_mov_b64 exec, 1")
    x=f"buffer_store_dwordx2 v[{t}:{t+1}], v9, s[24:27], s{soff} offen {CFG['sf']}"
    if vm: vm.issue("flag",x)
    else: a(x)
    a("s_mov_b64 exec, -1")

def gen():
    a=Asm(); N="concat_heads__softmax_full_mha__linear_attn_block__prompt_kernel"
    WB=114688; GR=[[2*i,2*i+1] for i in range(10)]+[[20]]
    a(f".globl {N}\n.p2align 8\n.type {N},@function\n{N}:")
    a("s_cmp_ge_u32 s2, 256\ns_cbranch_scc1 L_END")
    a("s_load_dwordx8 s[4:11], s[0:1], 0\ns_load_dwordx4 s[12:15], s[0:1], 32\ns_load_dwordx4 s[64:67], s[0:1], 48\ns_load_dwordx2 s[68:69], s[0:1], 64\ns_memrealtime s[50:51]")
    stamp(a,0,True)
    a("v_lshrrev_b32 v2, 6, v0\nv_and_b32 v1, 63, v0\ns_and_b32 s32, s2, 7\ns_lshr_b32 s30, s2, 3")
    a("v_readfirstlane_b32 s31, v2")
    a("s_mul_i32 s34, s30, 37\ns_lshr_b32 s34, s34, 8")
    a("s_mul_i32 s35, s34, 7\ns_sub_u32 s54, s30, s35")
    a("s_lshl_b32 s33, s32, 2\ns_add_u32 s53, s33, s34")
    a("s_and_b32 s28, s32, 1\ns_lshr_b32 s33, s32, 1\ns_lshl_b32 s33, s33, 2\ns_add_u32 s58, s33, s34")
    a("s_and_b32 s60, s31, 3\ns_lshr_b32 s61, s31, 2\ns_and_b32 s57, s31, 1")
    if CFG["rot"]==1:
        a("s_lshl_b32 s35, s34, 1\ns_add_u32 s35, s35, s54\ns_cmp_ge_u32 s35, 7\ns_cselect_b32 s36, 7, 0\ns_sub_u32 s35, s35, s36\ns_cmp_ge_u32 s35, 7\ns_cselect_b32 s36, 7, 0\ns_sub_u32 s40, s35, s36")
    elif CFG["rot"]==2: a("s_mov_b32 s40, s34")
    elif CFG["rot"]==3: a("s_mov_b32 s40, s54")
    else: a("s_mov_b32 s40, 0")
    a("v_lshrrev_b32 v5, 3, v1\nv_and_b32 v6, 7, v1\nv_lshrrev_b32 v11, 1, v5\nv_xor_b32 v12, v6, v11")
    a("s_lshl_b32 s34, s58, 7\ns_lshl_b32 s33, s60, 5\ns_add_u32 s34, s34, s33\nv_add_u32 v10, s34, v5\nv_mul_u32_u24 v10, 896, v10")
    a("v_lshl_add_u32 v96, v12, 4, v10\nv_xor_b32 v12, 4, v12\nv_lshl_add_u32 v97, v12, 4, v10\nv_add_u32 v97, 7168, v97\nv_add_u32 v98, 14336, v96\nv_add_u32 v99, 14336, v97")
    a("s_lshl_b32 s35, s60, 4\nv_add_u32 v7, s35, v5\nv_mul_u32_u24 v10, 2688, v7\nv_and_b32 v11, 1, v11\nv_lshlrev_b32 v11, 2, v11\nv_xor_b32 v11, v6, v11\nv_lshl_add_u32 v3, v11, 4, v10")
    a("s_lshl_b32 s34, s54, 7\nv_add_u32 v3, s34, v3\ns_lshl_b32 s36, s31, 10\ns_lshl_b32 s37, s60, 12\ns_lshl_b32 s59, s60, 11")
    a("s_lshl_b32 s35, s31, 3\nv_add_u32 v7, s35, v5\nv_mul_u32_u24 v10, 896, v7\nv_lshl_add_u32 v4, v11, 4, v10\nv_add_u32 v4, s34, v4")
    a("v_lshlrev_b32 v8, 4, v1\nv_mov_b32 v9, 0\nv_lshlrev_b32 v13, 2, v1")
    a("s_waitcnt lgkmcnt(0)")
    a("s_cmp_eq_u32 s28, 0\ns_cselect_b32 s4, s4, s10\ns_cselect_b32 s5, s5, s11\ns_cselect_b32 s6, s6, s12\ns_cselect_b32 s7, s7, s13")
    a("s_movk_i32 s41, 896\ns_movk_i32 s42, 1792\ns_mov_b32 s43, 0")
    srd(a,16,4,2048*448*2); srd(a,20,6,448*1344*2)
    vm=VM(a)
    def dma(u):
        part=u%2 if u<14 else 2
        a(f"s_lshl_b32 s38, s40, 7\ns_mul_i32 s39, s40, 172032")
        if part: a("s_add_u32 s40, s40, 1\ns_cmp_eq_u32 s40, 7\ns_cselect_b32 s40, 0, s40")
        for i in range(2):
            a(f"s_add_u32 m0, s59, {WB+(u%6)*8192+i*1024}\ns_add_u32 s39, s39, {f's{41+part}' if i==0 else 21504}")
            vm.issue(("d",u),"buffer_load_dwordx4 v3, s[20:23], s39 offen lds")
        if part==0:
            for i in range(4):
                a(f"s_add_u32 m0, s37, {(u//2)*16384+i*1024}\ns_nop 0")
                vm.issue(("d",u),f"buffer_load_dwordx4 v{96+i}, s[16:19], s38 offen lds")
    a("s_cmp_ge_u32 s30, 28\ns_cbranch_scc1 L_A0\ns_cmp_lt_u32 s31, 4\ns_cbranch_scc1 L_A0")
    dma(0); dma(1)
    a("L_A0:")
    srd(a,24,68,WS_SIZE); srd(a,44,66,256)
    a("s_and_b32 s55, s30, 1\ns_lshl_b32 s33, s32, 1\ns_add_u32 s55, s55, s33\ns_lshr_b32 s56, s30, 1")
    a("s_mul_i32 s33, s55, 7\ns_lshr_b32 s29, s33, 1\ns_lshl_b32 s29, s29, 9")
    a("s_lshl_b32 s34, s61, 3\ns_add_u32 s34, s34, s56\ns_and_b32 s34, s34, 15\ns_lshl_b32 s35, s60, 4\ns_add_u32 s34, s34, s35")
    a(f"s_lshl_b32 s70, s34, 15\ns_add_u32 s70, s70, s29\ns_add_u32 s70, s70, {KG}")
    a(f"s_lshl_b32 s71, s55, 6\ns_add_u32 s71, s71, s34\ns_lshl_b32 s71, s71, 11\ns_add_u32 s71, s71, {VF}")
    a(f"s_lshr_b32 s34, s33, 4\ns_add_u32 s35, s33, 6\ns_lshr_b32 s35, s35, 4\ns_sub_u32 s35, s35, s34\ns_lshl_b32 s34, s34, 11\ns_add_u32 s34, s34, {F7}\ns_lshl_b32 s35, s35, 11")
    a(f"v_and_b32 v10, 15, v1\nv_lshlrev_b32 v10, 7, v10\nv_bfe_u32 v11, v1, 4, 1\nv_mul_u32_u24 v11, s35, v11\nv_add3_u32 v158, v10, v11, s34")
    a(f"s_add_u32 s34, s34, {8<<11}\ns_lshl_b32 s35, s56, 7\ns_add_u32 s35, s35, s34\ns_lshl_b32 s33, s55, 7\ns_add_u32 s34, s34, s33")
    a("s_cmp_eq_u32 s31, 7\ns_cselect_b32 exec_hi, -1, 0\ns_mov_b32 exec_lo, 0\nv_add_u32 v158, s35, v11")
    a("s_cselect_b32 exec_lo, -1, 0\ns_mov_b32 exec_hi, 0\nv_mov_b32 v158, s34\ns_mov_b64 exec, -1")
    a(f"s_lshr_b32 s34, s53, 1\ns_and_b32 s34, s34, 15\ns_lshl_b32 s34, s34, 10\ns_add_u32 s34, s34, {F6}\nv_add_u32 v0, s34, v8")
    a("s_or_b32 s50, s50, 1\ns_lshl_b32 s34, s2, 3\ns_add_u32 s34, s34, s31\ns_cmp_lg_u32 s34, 2040\ns_cbranch_scc1 L_NN")
    a("v_mov_b32 v6, s50\nv_mov_b32 v7, s51\ns_mov_b64 exec, 1\nbuffer_store_dwordx2 v[6:7], v9, s[44:47], 0 offen sc1\ns_mov_b64 exec, -1\nL_NN:")
    a("s_cmp_ge_u32 s30, 28\ns_cbranch_scc1 L_IDLE\ns_cmp_lt_u32 s31, 4\ns_cbranch_scc1 L_CMP")
    def NONCE():
        L=lab("N"); D=lab("N")
        return (f"v_readfirstlane_b32 s50, v156\nv_readfirstlane_b32 s51, v157\ns_mov_b32 s52, {SPIN}\n{L}:\ns_cmp_lg_u32 s50, 0\ns_cbranch_scc1 {D}\ns_sub_u32 s52, s52, 1\ns_cmp_eq_u32 s52, 0\ns_cbranch_scc1 {D}\n"
          f"buffer_load_dwordx2 v[156:157], v9, s[44:47], 0 offen sc1\ns_waitcnt vmcnt(0)\nv_readfirstlane_b32 s50, v156\nv_readfirstlane_b32 s51, v157\ns_branch {L}\n{D}:")
    def get_nonce(): a(NONCE())
    nxt=2
    for g,grp in enumerate(GR):
        lim=min(20, grp[-1]+2*(CFG["la"] if g<6 else 2), (GR[g-2][-1] if g>=2 else -1)+6)
        while nxt<=lim: dma(nxt); nxt+=1
        if g==0: stamp(a,1)
        vm.wait(("d",grp[-1]))
        if 0<g<7: stamp(a,2+g,pst=True)
        a("s_barrier")
        if g==0: stamp(a,2)
    stamp(a,3); stamp(a,9,pst=True)
    a("buffer_load_dwordx2 v[156:157], v9, s[44:47], 0 offen sc1\ns_waitcnt vmcnt(0)"); get_nonce()
    srd(a,16,8,448*448*2); srd(a,20,14,448*448*2)
    if CFG["wop"]<2: a("s_and_b32 s34, s31, 1\ns_lshl_b32 s35, s34, 2\ns_sub_u32 s35, s31, s35\ns_mul_i32 s35, s35, 7168\nv_subrev_u32 v4, s35, v4\ns_lshl_b32 s36, s34, 12")
    a("s_barrier")
    stamp(a,4); stamp(a,5)
    if CFG.get("lsl",0): a(f"s_cmp_lt_u32 s31, 6\ns_cbranch_scc1 L_WO\ns_sleep {CFG['lsl']}\nL_WO:")
    def wo_loop():
        for p in range(2):
            a(f"s_add_u32 s33, s36, {WOA if p else WOB}\ns_mov_b32 s43, 0\nL_WO{p}:")
            for g in range(4):
                a(f"s_add_u32 m0, s33, {g*1024}\ns_add_u32 s42, s43, {g*7168}\nbuffer_load_dwordx4 v4, s[{20-4*p}:{23-4*p}], s42 offen lds")
            a(f"s_add_u32 s33, s33, 8192\ns_add_u32 s43, s43, {64*896}\ns_cmp_lg_u32 s43, {7*64*896}\ns_cbranch_scc1 L_WO{p}")
    if CFG["wop"]==0:
        a("s_cmp_ge_u32 s31, 6\ns_cbranch_scc1 L_ATT"); wo_loop()
    a("s_branch L_ATT")
    a("L_CMP:")
    a(f"s_lshl_b32 s41, s58, 2\ns_add_u32 s41, s41, s60")
    a("s_lshl_b32 s34, s54, 4\ns_add_u32 s35, s34, 22\ns_add_u32 s34, s34, 6\ns_mul_i32 s34, s34, 9363\ns_lshr_b32 s34, s34, 16\ns_mul_i32 s35, s35, 9363\ns_lshr_b32 s35, s35, 16\ns_sub_u32 s35, s35, s34")
    for r in range(4): a(f"v_mov_b32 v{16+r}, 0\nv_mov_b32 v{20+r}, 0x3f803f80")
    a("v_lshrrev_b32 v5, 4, v1\nv_lshlrev_b32 v5, 17, v5\nv_bfe_u32 v6, v1, 2, 2\nv_lshl_add_u32 v5, v6, 9, v5\nv_and_b32 v6, 3, v1\nv_lshl_add_u32 v5, v6, 4, v5")
    a(f"v_mul_u32_u24 v6, 7296, v1\ns_lshl_b32 s38, s34, 17\ns_lshl_b32 s39, s41, 11\ns_add_u32 s38, s38, s39\ns_add_u32 s38, s38, {VF+448}")
    a(f"s_mul_i32 s39, s41, {TBV}\ns_lshl_b32 s42, s54, 4\ns_add_u32 s39, s39, s42\ns_add_u32 s39, s39, {VT+7168}")
    a("s_cmp_eq_u32 s35, 3\ns_cselect_b32 s49, 0xffff, 0\ns_cmp_eq_u32 s28, 0\ns_cselect_b32 s38, s38, s39\ns_cselect_b32 s48, -1, 15\ns_cselect_b32 s49, s49, 0\ns_cselect_b64 s[42:43], -1, 0")
    a("v_cndmask_b32 v5, v6, v5, s[42:43]\ns_mov_b64 exec, s[48:49]")
    a("buffer_store_dwordx4 v[20:23], v5, s[24:27], s38 offen sc1")
    a(f"s_mov_b64 exec, -1\ns_add_u32 s34, s34, s60\ns_cmp_lt_u32 s60, s35\ns_cselect_b32 s38, s28, 0\ns_cmp_eq_u32 s34, s58\ns_cselect_b32 s38, s38, 0\ns_cmp_eq_u32 s38, 0\ns_cbranch_scc1 L_NZ")
    a(f"s_lshl_b32 s38, s34, 12\ns_add_u32 s38, s38, {KVS}\ns_lshl_b32 s39, s34, 7\ns_add_u32 s39, s39, {CNT}")
    for k in range(4): a(f"buffer_store_dwordx4 v[16:19], v8, s[24:27], s38 offen offset:{k*1024} sc1")
    a("s_mov_b64 exec, 1\nbuffer_store_dwordx4 v[16:19], v9, s[24:27], s39 offen sc1\ns_mov_b64 exec, -1\nL_NZ:")
    a("s_lshr_b32 s43, s31, 1\ns_lshl_b32 s41, s58, 1\ns_add_u32 s41, s41, s57\ns_lshl_b32 s41, s41, 1\ns_lshl_b32 s42, s54, 1\ns_add_u32 s42, s42, s43")
    a("v_and_b32 v5, 31, v1\nv_lshrrev_b32 v6, 5, v1\ns_lshl_b32 s34, s57, 6\nv_add_u32 v7, s34, v5")
    a("v_bfe_u32 v10, v7, 1, 3\nv_xor_b32 v10, v10, v6\nv_lshlrev_b32 v7, 7, v7")
    for ks in range(4):
        a(f"v_xor_b32 v11, {2*ks}, v10\nv_lshl_add_u32 v{160+ks}, v11, 4, v7\nv_add_u32 v{165+ks}, 65536, v{160+ks}")
    a("v_bfe_u32 v7, v1, 2, 2\nv_lshl_add_u32 v10, v6, 3, v7\nv_lshlrev_b32 v10, 7, v10")
    a("v_bfe_u32 v11, v1, 4, 1\nv_lshlrev_b32 v11, 5, v11\nv_and_b32 v12, 3, v1\nv_lshl_add_u32 v11, v12, 3, v11")
    a("s_lshl_b32 s34, s43, 6\nv_add_u32 v11, s34, v11\nv_lshrrev_b32 v7, 1, v7\nv_lshlrev_b32 v7, 6, v7\nv_xor_b32 v11, v11, v7")
    a(f"s_mov_b32 s34, {WB}\nv_add3_u32 v164, v10, v11, s34")
    a(f"s_cmp_eq_u32 s28, 0\ns_cselect_b32 s34, 0, {f2u(1e-6)}")
    for r in range(16,80): a(f"v_mov_b32 v{r}, s34")
    a("s_lshl_b32 s34, s42, 5\nv_add_u32 v152, s34, v5\nv_mul_u32_u24 v10, 2341, v152\nv_lshrrev_b32 v10, 16, v10")
    a("v_mul_u32_u24 v11, 28, v10\nv_sub_u32 v11, v152, v11\nv_lshlrev_b32 v10, 17, v10\nv_lshl_add_u32 v10, v11, 4, v10\nv_lshl_add_u32 v153, v6, 9, v10")
    a("v_mul_u32_u24 v10, 7168, v6\nv_lshl_add_u32 v154, v152, 4, v10\nv_lshl_add_u32 v155, v6, 7, v154\nv_lshlrev_b32 v159, 2, v6")
    a("buffer_load_dwordx2 v[156:157], v9, s[44:47], 0 offen sc1")
    def st(k):
        if k<28: sl,ks=divmod(k,4); X=176+16*(k%3); return [2*sl,2*sl+1],sl,ks,X,[X+8,X+12]
        sl,ks=divmod(k-28,4); X=112+12*(k%3); return [14+sl],sl,ks,X,[X+8]
    def rdl(k):
        us,sl,ks,X,Ws=st(k); xa=(160 if sl<4 else 165)+ks
        w=[f"ds_read_b64_tr_b16 {v(W+2*uu,2)}, v164 offset:{(u%6)*8192+ks*2048+uu*512}" for u,W in zip(us,Ws) for uu in range(2)]
        x=[f"ds_read_b128 {v(X,4)}, v{xa} offset:{(sl%4)*16384}",f"ds_read_b128 {v(X+4,4)}, v{xa} offset:{(sl%4)*16384+4096}"]
        return w[:2]+x[:1]+w[2:]+x[1:]
    def swp(P): return [f"v_permlane32_swap_b32 v{P}, v{P+2}",f"v_permlane32_swap_b32 v{P+1}, v{P+3}",f"v_permlane32_swap_b32 v{P+4}, v{P+6}",f"v_permlane32_swap_b32 v{P+5}, v{P+7}"]
    def cvt(d,s_,n=8): return [f"v_cvt_pk_bf16_f32 v{d+j}, v{s_+2*j}, v{s_+1+2*j}" for j in range(n)]
    first={g[0] for g in GR}
    def mainloop(p,fills):
        stamp(a,1)
        a("s_barrier")
        stamp(a,2)
        for x in rdl(0)+rdl(1): a(x)
        f=fills[1]+fills[0] if CFG.get('vf',0) else fills[0]+fills[1]
        for k in range(56):
            us,sl,ks,X,Ws=st(k); mm=[]
            for t in range(2):
                for W,col in zip(Ws,(1,2) if k<28 else (0,)):
                    A=16+32*col; z="0" if (col==2 and k==0) else None
                    tr=(col==2) or (col==1 and p==1)
                    mm.append(mfma(A+16*t,X+4*t,W,z) if tr else mfma(A+16*t,W,X+4*t))
            nx=rdl(k+2) if k+2<56 else []
            bar=nx and (k+2)%4==0 and st(k+2)[0][0] in first
            a(f"s_waitcnt lgkmcnt({0 if (bar or k==55) else len(rdl(k+1))})")
            if bar: a("s_barrier")
            n=CFG["fill"][p] if k>=30 else 0
            per=-(-len(nx)//len(mm))
            for q,m in enumerate(mm):
                a(m)
                for x in nx[q*per:(q+1)*per]: a(x)
                c=(n+1)//2 if q==0 else n//2
                for x in f[:c]: a(x)
                del f[:c]
        for x in f: a(x)
        stamp(a,3); stamp(a,9,pst=True)
        L=lab("E"); lt=(p==0 and CFG.get("abe",1))
        if lt:
            a("s_nop 10")
            for x in fills[2]: a(x)
        a(f"s_lshl_b32 s62, s28, 3\ns_add_u32 s62, s62, s54\ns_lshl_b32 s62, s62, 4\ns_add_u32 s62, s62, s58\ns_lshl_b32 s62, s62, 7\ns_add_u32 s63, s62, {F7}\ns_add_u32 s62, s62, {F1}")
        a(f"s_waitcnt vmcnt({5 if lt else 0})"); get_nonce()
        a(f"s_barrier\ns_cmp_lg_u32 s31, 0\ns_cbranch_scc1 {L}")
        flag_store(a,63); a(f"{L}:")
        if not lt:
            a("s_nop 3")
            for x in fills[2]: a(x)
    ST="buffer_store_dwordx4 {}, v{}, s[24:27], s{} offen offset:{} sc1"
    a("s_cmp_eq_u32 s28, 0\ns_cbranch_scc0 L_PB")
    a(f"s_mov_b32 s34, {f2u(CS)}\ns_lshl_b32 s35, s41, 15\ns_lshl_b32 s37, s42, 11\ns_add_u32 s35, s35, s37\ns_add_u32 s35, s35, {KG}\ns_lshl_b32 s37, s41, 11\ns_add_u32 s37, s37, {VF}")
    a(f"s_lshl_b32 s38, s42, 6\ns_add_u32 s38, s38, s41\ns_lshl_b32 s38, s38, 2\ns_add_u32 s38, s38, {NRM}")
    def qk_epi(A,scale,noff,last):
        f=[]
        for t in range(2):
            T=176+8*t
            if scale: f+=[f"v_mul_f32 v{A+16*t+r}, s34, v{A+16*t+r}" for r in range(16)]
            f+=cvt(T,A+16*t)+[f"v_mul_f32 v{170+t}, v{A+16*t}, v{A+16*t}",f"v_fmac_f32 v{170+t}, v{A+16*t+1}, v{A+16*t+1}"]+swp(T)
            f+=[ST.format(v(T,4),8,35,0),ST.format(v(T+4,4),8,35,1024)+f"\ns_add_u32 s35, s35, {TBK if t==0 else last}"]
        for r in range(2,16): f+=[f"v_fmac_f32 v170, v{A+r}, v{A+r}",f"v_fmac_f32 v171, v{A+16+r}, v{A+16+r}"]
        f+=["s_nop 1\nv_permlane32_swap_b32 v170, v171\nv_add_f32 v170, v170, v171"]
        for m in ("quad_perm:[1,0,3,2]","quad_perm:[2,3,0,1]","row_half_mirror","row_mirror","row_bcast:15"):
            f+=[f"s_nop 1\nv_max_f32_dpp v170, v170, v170 {m} row_mask:{'0xa' if 'bcast' in m else '0xf'} bank_mask:0xf"]
        f+=[f"s_mov_b32 exec_lo, 0x80000000\ns_mov_b32 exec_hi, 0x80000000\nbuffer_store_dword v170, v159, s[24:27], s38 offen offset:{noff} sc1\ns_mov_b64 exec, -1"]
        return f
    fv=cvt(192,80)+[ST.format(v(192,4),153,37,0),ST.format(v(196,4),153,37,1024)]+cvt(200,96)+[ST.format(v(200,4),153,37,2048),ST.format(v(204,4),153,37,3072)]
    mainloop(0,[qk_epi(48,True,3584,(-KG-TBK)&0xffffffff),fv,qk_epi(16,False,0,0)])
    a("s_branch L_PE")
    a("L_PB:")
    a(f"s_mov_b32 s34, {f2u(LOG2E)}\nv_mov_b32 v170, {f2u(-1e-6*LOG2E)}\nv_mov_b32 v171, {f2u(1e-6)}")
    a(f"s_mul_i32 s43, s41, {TBS}\ns_add_u32 s35, s43, {PKT}\ns_lshl_b32 s37, s42, 11\ns_add_u32 s37, s37, s43\ns_add_u32 s37, s37, {PQG}\ns_mul_i32 s39, s41, {TBV}\ns_add_u32 s39, s39, {VT}")
    def phi(base,tmp,dst):
        f=[f"v_fma_f32 v{tmp+r}, v{base+r}, s34, v170" for r in range(16)]
        for r in range(16): f+=[f"v_exp_f32 v{tmp+r}, v{tmp+r} clamp",f"v_max_f32 v{base+r}, v{base+r}, v171"]
        return f+[f"v_add_f32 v{base+r}, v{base+r}, v{tmp+r}" for r in range(16)]+cvt(dst,base)
    fq=[]; fk=[]; fv=[]
    for t in range(2):
        T=192+8*t
        fq+=phi(16+16*t,176,T)+["s_nop 0"]+swp(T)+[ST.format(v(T,4),8,37,0),ST.format(v(T+4,4),8,37,1024)+f"\ns_add_u32 s37, s37, {TBS}"]
        fk+=phi(48+16*t,176,T)+[ST.format(v(T+4*m,4),154,35,0)+"\ns_add_u32 s35, s35, 14336" for m in range(2)]
        fv+=cvt(208+8*t,80+16*t)+[ST.format(v(208+8*t+4*m,4),155,39,0)+"\ns_add_u32 s39, s39, 14592" for m in range(2)]
    mainloop(1,[fk,fv,fq])
    a("L_PE:")
    stamp(a,4); stamp(a,10,pst=True)
    def final_flag():
        L=lab("F")
        a("s_waitcnt vmcnt(0)")
        a(f"s_lshl_b32 s35, s31, 2\nv_mov_b32 v10, 0\nv_add_u32 v11, s35, v10\nv_mov_b32 v14, s50\nds_write_b32 v11, v14\ns_waitcnt lgkmcnt(0)\nds_read_b128 v[16:19], v10\ns_waitcnt lgkmcnt(0)")
        a(f"v_xor_b32 v16, v16, v14\nv_xor_b32 v17, v17, v14\nv_xor_b32 v18, v18, v14\nv_xor_b32 v19, v19, v14\nv_or3_b32 v16, v16, v17, v18\nv_or_b32 v16, v16, v19\ns_nop 0\nv_readfirstlane_b32 s35, v16\ns_nop 0")
        a(f"s_cmp_lg_u32 s35, 0\ns_cbranch_scc1 {L}")
        flag_store(a,62); a(f"{L}:")
        stamp(a,5); stamp(a,11,pst=True)
    if not CFG["hoist"]: final_flag()
    a("s_branch L_ATT")
    a("L_IDLE:\ns_sub_u32 s34, s30, 28\ns_lshl_b32 s34, s34, 3\ns_add_u32 s34, s34, s31")
    if CFG["cpf"]:
        a(f"s_getpc_b64 s[38:39]\nL_PC:\ns_sub_u32 s38, s38, L_PC-{N}\ns_subb_u32 s39, s39, 0\ns_lshl_b32 s35, s34, 10\nv_add_u32 v16, s35, v8")
        for k in range(2):
            a(f"v_min_u32 v17, L_CEND-{N}-16, v16\nv_mov_b32 v19, s39\nv_add_co_u32 v18, vcc, s38, v17\ns_nop 1\nv_addc_co_u32 v19, vcc, 0, v19, vcc\nglobal_load_dwordx4 v[{24+4*k}:{27+4*k}], v[18:19], off\nv_add_u32 v16, 32768, v16")
    a("buffer_load_dwordx2 v[156:157], v9, s[44:47], 0 offen sc1\ns_mul_i32 s34, s34, 13312")
    srd(a,16,8,448*448*2); srd(a,20,14,448*448*2)
    for k in range(13):
        a(f"buffer_load_dwordx4 v[16:19], v8, s[16:19], s34 offen\nbuffer_load_dwordx4 v[20:23], v8, s[20:23], s34 offen\ns_add_u32 s34, s34, 1024")
    stamp(a,1); a("s_waitcnt vmcnt(0)"); get_nonce()
    stamp(a,2); stamp(a,3); stamp(a,4); stamp(a,5)
    a("L_ATT:")
    vm=VM(a)
    Q=[16,24]; O=[64,80]; S=[96,112]; P=[128,136]; R=192
    PL1="buffer_load_dwordx2 v[10:11], v158, s[24:27], 0 offen sc1"
    PC1="v_cmp_ne_u64 s[48:49], s[50:51], v[10:11]\ns_nop 0"
    PL3="buffer_load_dwordx4 v[32:35], v0, s[24:27], 0 offen "+CFG["p3f"]
    PC3="v_cmp_ne_u64 s[48:49], s[50:51], v[32:33]\nv_cmp_ne_u64 s[34:35], s[50:51], v[34:35]\ns_nop 0\ns_or_b64 s[48:49], s[48:49], s[34:35]"
    def ld(vm,kind,kt):
        kt0=kt
        base=R+16*(kt%4)+(0 if kind=="K" else 8)
        if CFG.get("nokv") and kt>=4: kt=kt%4
        a(f"s_xor_b32 s42, s70, {kt*TBK}" if kind=="K" else f"s_xor_b32 s42, s71, {kt*2048}")
        kt=kt0
        for m in range(2):
            vm.issue((kind,kt),f"buffer_load_dwordx4 {v(base+4*m,4)}, v{8 if kind=='K' else 5}, s[24:27], s42 offen offset:{m*1024} {CFG.get('kvf','sc1')}")
    def W(vmx,tag):
        if vmx: vmx.wait(tag)
        else: a("s_waitcnt vmcnt(0)")
    def I(vmx,tag,txt):
        if vmx: vmx.issue(tag,txt,True)
        else: a(txt)
    def i1_a(vmx):
        a("s_mul_i32 s33, s55, 7\ns_lshr_b32 s34, s33, 4\ns_add_u32 s34, s34, 448")
        a("v_and_b32 v3, 19, v1\nv_bfe_u32 v2, v1, 2, 1\nv_lshl_add_u32 v3, v2, 3, v3\nv_bfe_u32 v2, v1, 3, 1\nv_lshl_add_u32 v3, v2, 2, v3")
        a("v_lshrrev_b32 v5, 5, v1\nv_mul_u32_u24 v6, 7168, v5\nv_lshl_add_u32 v3, v3, 4, v6\nv_lshl_add_u32 v6, v5, 7, v6")
        a("v_and_b32 v5, 31, v1\nv_add_u32 v7, 20, v5\nv_lshrrev_b32 v7, 5, v7\nv_sub_u32 v2, v5, v7\nv_lshrrev_b32 v7, 4, v5\nv_sub_u32 v2, v2, v7\nv_add_u32 v7, 4, v5\nv_lshrrev_b32 v7, 5, v7\nv_sub_u32 v2, v2, v7")
        a("s_lshl_b32 s33, s33, 2\nv_add_u32 v2, s33, v2\nv_and_b32 v5, 11, v5\nv_cmp_eq_u32 s[48:49], 11, v5\nv_mov_b32 v7, s34\ns_nop 0\nv_cndmask_b32 v2, v2, v7, s[48:49]")
        a("v_lshl_add_u32 v2, v2, 4, v6")
    def i1_b(vmx):
        a(f"s_mul_i32 s34, s56, {4*TBS}\ns_lshr_b32 s35, s29, 2\ns_add_u32 s34, s34, s35\ns_add_u32 s34, s34, {PKT}\ns_mul_i32 s35, s56, {4*TBV}\ns_add_u32 s35, s35, {VT}")
        for i in range(8):
            I(vmx,"pay",f"buffer_load_dwordx4 {v(32+4*i,4)}, v3, s[24:27], s34 offen sc1")
            I(vmx,"pay",f"buffer_load_dwordx4 {v(144+4*i,4)}, v2, s[24:27], s35 offen sc1")
            if i<7: a("s_add_u32 s34, s34, 14336\ns_add_u32 s35, s35, 14592")
    def i1_c(vmx):
        W(vmx,"pay")
        for i in range(8): a(mfma(176,32+4*i,144+4*i,"0" if i==0 else None))
    def i1_d(vmx):
        a(f"s_lshl_b32 s42, s55, 12\ns_add_u32 s42, s42, {KVS}")
        for r in range(16): I(vmx,"at",f"buffer_atomic_add_f32 v{176+r}, v13, s[24:27], s42 offen offset:{r*256}")
    def i1_e(vmx):
        if CFG["late"]: W(vmx,"at")
        a(f"s_lshl_b32 s42, s55, 7\ns_add_u32 s42, s42, {CNT}\nv_mov_b32 v7, 1\ns_mov_b64 exec, 1")
        I(vmx,"cn","buffer_atomic_add v7, v9, s[24:27], s42 offen"); a("s_mov_b64 exec, -1")
    PL4="buffer_load_dword v14, v9, s[24:27], s33 offen "+CFG["p4f"]+"\nbuffer_load_dwordx2 v[6:7], v10, s[24:27], 0 offen "+CFG["p4f"]
    def i2_a(vmx):
        a(f"s_mul_i32 s33, s55, 7\ns_lshr_b32 s34, s33, 4\ns_add_u32 s35, s33, 6\ns_lshr_b32 s35, s35, 4\ns_sub_u32 s35, s35, s34\ns_lshl_b32 s35, s35, 11")
        a(f"s_lshl_b32 s34, s34, 11\ns_lshl_b32 s33, s56, {CFG['fs']}\ns_add_u32 s34, s34, s33\ns_add_u32 s34, s34, {F2}\nv_and_b32 v10, 1, v1\nv_mul_u32_u24 v10, s35, v10\nv_add_u32 v10, s34, v10")
        a(f"s_lshl_b32 s33, s55, 7\ns_add_u32 s33, s33, {CNT}")
        for x in PL4.split("\n"): I(vmx,"p4",x)
    def i2_b(vmx):
        W(vmx,"p4"); spin(a,"v_cmp_gt_u32 s[48:49], 16, v14\nv_cmp_ne_u64 s[34:35], s[50:51], v[6:7]\ns_nop 0\ns_or_b64 s[48:49], s[48:49], s[34:35]",PL4)
        a(f"s_lshl_b32 s34, s55, 12\ns_add_u32 s34, s34, {KVS}\ns_lshl_b32 s35, s56, 2\ns_add_u32 s35, s35, s60\ns_mul_i32 s35, s35, {TBS}\ns_add_u32 s35, s35, s29\ns_add_u32 s35, s35, {PQG}")
        for r in range(16): I(vmx,"kv",f"buffer_load_dword v{144+r}, v13, s[24:27], s34 offen offset:{r*256} sc1")
        for m in range(2): I(vmx,"kv",f"buffer_load_dwordx4 {v(168+4*m,4)}, v8, s[24:27], s35 offen offset:{m*1024} sc1")
    def qmask(b):
        a(f"v_cndmask_b32 v{b}, v{b}, 0, s[38:39]\nv_cndmask_b32 v{b+1}, v{b+1}, 0, s[38:39]\nv_cndmask_b32 v{b+6}, v{b+6}, 0, s[40:41]\nv_cndmask_b32 v{b+7}, v{b+7}, 0, s[40:41]")
    def i2_c(vmx):
        W(vmx,"kv")
        for j in range(8): a(f"v_cvt_pk_bf16_f32 v{160+j}, v{144+2*j}, v{145+2*j}")
        qmask(168); a("s_nop 1")
        a(mfma(176,160,168,"0")); a(mfma(176,164,172))
    def i2_d(vmx):
        a(f"v_add_f32 v15, {f2u(1e-6)}, v183\nv_rcp_f32 v15, v15\ns_nop 0")
        for r in range(16): a(f"v_mul_f32 v{176+r}, v{176+r}, v15" if r%8!=7 else f"v_mov_b32 v{176+r}, {TAG}")
        for j in range(8): a(f"v_cvt_pk_bf16_f32 v{160+j}, v{176+2*j}, v{177+2*j}")
        for m in range(2): I(vmx,"ob",f"buffer_store_dwordx4 {v(160+4*m,4)}, v8, s[24:27], s58 offen offset:{m*1024} {CFG['osf']}")
    def f6(vmx):
        a(f"s_lshl_b32 s34, s56, 4\ns_add_u32 s34, s34, s55\ns_lshl_b32 s34, s34, 3\ns_add_u32 s34, s34, s31\ns_lshl_b32 s34, s34, 3\ns_add_u32 s34, s34, {F6}")
        if vmx: vmx.wait("clr")
        flag_store(a,34,vmx)
    def special(f,vmx):
        L=lab("S"); a(f"s_cbranch_vccz {L}"); f(vmx); a(f"{L}:")
    def ofr(p,F):
        return "\n".join(f"buffer_load_dwordx4 {v(F+4*f,4)}, v8, s[24:27], s{62+f//4} offen offset:{(f%4)*1024} {CFG['off']}" for f in range(8))
    def ofr_addr(p):
        a(f"s_lshl_b32 s62, s53, 1\ns_add_u32 s62, s62, s57\ns_lshl_b32 s62, s62, 2\ns_lshr_b32 s63, s31, 1\ns_add_u32 s62, s62, s63\ns_lshl_b32 s62, s62, 13\ns_add_u32 s62, s62, {OF+p*2*MB}\ns_add_u32 s63, s62, 4096")
    if CFG.get("ep",1): a("s_setprio 3")
    if CFG["wop"]==2: srd(a,16,8,448*448*2); srd(a,20,14,448*448*2)
    def wodma(k,vmx):
        p,j=divmod(k,7); b=(WOA if p else WOB)+j*8192
        a(f"s_add_u32 m0, s36, {b}\ns_mov_b32 s43, {j*64*896}")
        x=f"buffer_load_dwordx4 v4, s[{20-4*p}:{23-4*p}], s43 offen lds"
        if vmx: vmx.issue("wo",x)
        else: a(x)
    a("s_cmp_eq_u32 s31, 7\ns_cselect_b64 vcc, -1, 0")
    a(f"v_and_b32 v2, 1, v1\nv_lshlrev_b32 v2, 4, v2\ns_lshl_b32 s34, s56, 7\ns_add_u32 s34, s34, {(F1-F7)&0xffffffff}\nv_readlane_b32 s35, v158, 0\nv_readlane_b32 s33, v158, 16\ns_nop 0\ns_sub_u32 s33, s33, s35\ns_add_u32 s34, s34, s35\nv_lshrrev_b32 v2, 4, v2\nv_mul_u32_u24 v2, s33, v2\nv_add_u32 v2, s34, v2")
    special(i1_a,vm)
    a("s_lshl_b32 s34, s56, 2\ns_lshl_b32 s35, s61, 1\ns_add_u32 s34, s34, s35\ns_lshr_b32 s35, s60, 1\ns_add_u32 s34, s34, s35\ns_lshl_b32 s34, s34, 4\ns_add_u32 s34, s34, s55")
    a(f"s_lshl_b32 s34, s34, 1\ns_and_b32 s35, s60, 1\ns_add_u32 s34, s34, s35\ns_lshl_b32 s34, s34, 10\ns_add_u32 s59, s34, {OF}")
    a(f"s_lshl_b32 s34, s56, 2\ns_add_u32 s34, s34, s60\ns_lshl_b32 s34, s34, 4\ns_add_u32 s34, s34, s55\ns_lshl_b32 s34, s34, 11\ns_add_u32 s34, s34, {OF+2*MB}\ns_cmp_lt_u32 s31, 4\ns_cselect_b32 s58, s34, {WS_SIZE}")
    a("v_and_b32 v5, 31, v1\nv_add_u32 v7, 20, v5\nv_lshrrev_b32 v7, 5, v7\nv_sub_u32 v6, v5, v7\nv_lshrrev_b32 v7, 4, v5\nv_sub_u32 v6, v6, v7\nv_add_u32 v7, 4, v5\nv_lshrrev_b32 v7, 5, v7\nv_sub_u32 v6, v6, v7")
    a("v_and_b32 v5, 11, v5\nv_cmp_eq_u32 s[48:49], 11, v5\nv_lshrrev_b32 v5, 5, v1\nv_lshlrev_b32 v5, 9, v5\nv_cndmask_b32 v6, v6, 28, s[48:49]\nv_lshl_add_u32 v5, v6, 4, v5")
    a(f"s_mul_i32 s33, s55, 7\ns_lshr_b32 s34, s33, 3\ns_add_u32 s35, s33, 6\ns_lshr_b32 s35, s35, 3\ns_lshl_b32 s34, s34, 8\ns_lshl_b32 s35, s35, 8")
    a(f"s_add_u32 s34, s34, {NRM}\ns_add_u32 s35, s35, {NRM}\ns_lshl_b32 s37, s56, 4\nv_and_b32 v12, 12, v13\nv_add_u32 v12, s37, v12")
    a(f"s_lshl_b32 s37, s56, 2\ns_lshl_b32 s38, s61, 1\ns_add_u32 s37, s37, s38\ns_lshl_b32 s37, s37, 15\ns_add_u32 s37, s37, s29\ns_add_u32 s38, s37, {TBK}")
    if CFG["hoist"]:
        a("s_cmp_ge_u32 s31, 4\ns_cbranch_scc1 L_NF\ns_cmp_ge_u32 s30, 28\ns_cbranch_scc1 L_B1\ns_mov_b32 s63, s35"); final_flag(); a("s_mov_b32 s35, s63\ns_branch L_B1\nL_NF:")
    a("s_cmp_eq_u32 s31, 4\ns_cbranch_scc1 L_B1\ns_cmp_eq_u32 s31, 5\ns_cselect_b64 s[48:49], -1, 0\nv_cndmask_b32 v158, v158, v2, s[48:49]\ns_mov_b32 exec_hi, vcc_hi")
    PL="buffer_load_dwordx2 v[10:11], v158, s[24:27], 0 offen "+CFG["pf"]
    a(PL+"\ns_waitcnt vmcnt(0)"); spin(a,PC1,PL); a("s_mov_b64 exec, -1")
    stamp(a,6)
    a("s_cmp_lg_u32 s31, 6\ns_cbranch_scc1 L_N6")
    if CFG.get("wrm",0):
        a(f"s_lshl_b32 s42, s56, 15\ns_add_u32 s42, s42, s29\ns_add_u32 s42, s42, {KG}\ns_lshl_b32 s43, s55, 6\ns_add_u32 s43, s43, s56\ns_lshl_b32 s43, s43, 11\ns_add_u32 s43, s43, {VF}")
        for k in range(4):
            for m in range(2): a(f"buffer_load_dwordx4 v[32:35], v8, s[24:27], s42 offen offset:{m*1024} sc1\nbuffer_load_dwordx4 v[40:43], v8, s[24:27], s43 offen offset:{m*1024} sc1")
            if k<3: a(f"s_add_u32 s42, s42, {16<<15}\ns_add_u32 s43, s43, {16<<11}")
    a("L_N6:\ns_cbranch_vccz L_B1\ns_mov_b64 s[62:63], s[34:35]")
    i1_b(None)
    if not CFG["late"]: i1_c(None); a("s_nop 15\ns_nop 3"); i1_d(None)
    a("s_mov_b64 s[34:35], s[62:63]\nL_B1:\ns_barrier")
    if CFG.get("x7"): stamp(a,3)
    vm.issue("nk","buffer_load_dword v10, v13, s[24:27], s34 offen offset:3584 sc1")
    vm.issue("nk","buffer_load_dword v11, v13, s[24:27], s35 offen offset:3584 sc1")
    vm.issue("n","buffer_load_dword v14, v12, s[24:27], s34 offen sc1")
    vm.issue("n","buffer_load_dword v15, v12, s[24:27], s35 offen sc1")
    for qb in range(2):
        for m in range(2):
            vm.issue("q",f"buffer_load_dwordx4 {v(Q[qb]+4*m,4)}, v8, s[24:27], s{37+qb} offen offset:{m*1024} sc1")
    ld(vm,"K",0)
    if CFG.get("pb",1): a("s_barrier")
    PRO=(("K",1),("V",0))+((("V",1),("K",2),("K",3)),(("K",2),),())[CFG["pro"]]
    for x in PRO: ld(vm,*x)
    def w7(x):
        a(f"s_waitcnt vmcnt({10+2*len(PRO)})")
        for i in range(8): a(mfma(176,32+4*i,144+4*i,"0" if i==0 else None))
        a("s_nop 15\ns_nop 3"); i1_d(x)
    if CFG['late']: special(w7,vm)
    if CFG.get("x7"): stamp(a,4)
    def clr(vmx):
        vmx.issue("clr","buffer_store_dwordx4 v[36:39], v8, s[24:27], s59 offen sc1")
        for m in range(2): vmx.issue("clr",f"buffer_store_dwordx4 v[36:39], v8, s[24:27], s58 offen offset:{m*1024} sc1")
    SCH=()
    LSCH={0:{CFG.get("ct",1):(("K",CFG.get("ct",1)//2+4),"C")},1:{0:(("V",1),("K",3)),1:(("V",2),("K",4)),2:(("V",3),),3:(("K",5),"C")},
          2:{0:(("K",2),("V",1)),1:(("K",3),("V",2)),2:(("K",4),("V",3)),3:(("K",5),"C")}}[CFG["pro"]]
    def sch(l,vmx):
        for x in l:
            if x=="C": clr(vmx)
            else: ld(vmx,*x)
    for r in range(4): a(f"v_mov_b32 v{36+r}, 0")
    sch(SCH,vm)
    if CFG["stop"]=="P":
        a("s_waitcnt vmcnt(0)"); stamp_out(a,7); a("L_END:\ns_endpgm"); return a
    a("s_bitcmp1_b32 s55, 0\ns_cselect_b32 s38, -1, 0\ns_mov_b32 s39, 0\ns_mov_b32 s40, 0\ns_cselect_b32 s41, 0, -1")
    vm.wait("nk")
    a("v_add_f32 v10, v10, v11\ns_nop 1")
    for m in ("quad_perm:[1,0,3,2]","quad_perm:[2,3,0,1]","row_half_mirror","row_mirror"):
        a(f"v_max_f32_dpp v10, v10, v10 {m} row_mask:0xf bank_mask:0xf\ns_nop 1")
    a("v_readlane_b32 s32, v10, 0\nv_readlane_b32 s33, v10, 16\nv_readlane_b32 s42, v10, 32\nv_readlane_b32 s43, v10, 48\ns_nop 1")
    a("s_max_u32 s32, s32, s33\ns_max_u32 s42, s42, s43\ns_max_u32 s32, s32, s42")
    vm.wait("n")
    if CFG.get("x7"): stamp(a,5)
    if not CFG["late"]: special(i1_e,vm)
    a("v_add_f32 v14, v14, v15\ns_nop 1")
    for m in ("quad_perm:[1,0,3,2]","quad_perm:[2,3,0,1]"):
        a(f"v_max_f32_dpp v14, v14, v14 {m} row_mask:0xf bank_mask:0xf\ns_nop 1")
    a("v_mul_f32 v14, s32, v14\ns_nop 0\nv_readfirstlane_b32 s32, v14\ns_nop 1")
    vm.wait("q"); qmask(Q[0]); qmask(Q[1])
    a(f"s_cmp_le_u32 s32, {f2u(TH*TH)}\ns_cbranch_scc0 L_SLOW")
    def Kf(kt,m): return R+16*(kt%4)+4*m
    def Vf(kt,m): return R+16*(kt%4)+8+4*m
    NT=32
    def qk(i,m):
        kt,qb=divmod(i,2)
        if m==0 and qb==0: vm.wait(("K",kt))
        a(mfma(S[qb],Kf(kt,m),Q[qb]+4*m,"0" if m==0 else None))
    def pv(i,m):
        kt,qb=divmod(i,2)
        if m==0 and qb==0: vm.wait(("V",kt))
        a(mfma(O[qb],Vf(kt,m),P[qb]+4*m,"0" if (kt==0 and m==0) else None))
    def e(i,r): qb=i%2; return f"v_exp_f32 v{S[qb]+r}, v{S[qb]+r}"
    def c(i,j): qb=i%2; return f"v_cvt_pk_bf16_f32 v{P[qb]+j}, v{S[qb]+2*j}, v{S[qb]+2*j+1}"
    ins=dict(zip(CFG['ins'],(i2_a,i2_b,i2_c,i2_d))); t2=CFG['ins'][0]
    if CFG.get("noB"): ins={}
    stamp(a,7)
    a("s_setprio 3")
    qk(0,0); qk(0,1)
    a("s_nop 11")
    for i in range(NT):
        seq=[e(i,0),e(i,1),e(i,2),c(i,0),e(i,3),e(i,4),c(i,1),e(i,5),e(i,6),c(i,2),e(i,7),e(i,8),c(i,3),e(i,9),e(i,10),c(i,4),e(i,11),e(i,12),c(i,5),e(i,13),e(i,14),c(i,6),e(i,15)]
        if i in CFG["prio"]: a(f"s_setprio {2-CFG['prio'].index(i)}")
        a(seq[0])
        if i>0: a(c(i-1,7))
        if i+1<NT: qk(i+1,0)
        for x in seq[1:5]: a(x)
        if i+1<NT: qk(i+1,1)
        for x in seq[5:11]: a(x)
        if i>0: pv(i-1,0)
        if i==t2:
            vm.drop_sp(); a("s_cmp_lt_u32 s31, 4\ns_cselect_b64 vcc, -1, 0")
        if i in ins: special(ins[i],vm)
        j=i//2
        if i in LSCH: sch(LSCH[i],vm)
        elif i%2==0:
            if j+2<16: ld(vm,"V",j+2)
        else:
            if j+4<16: ld(vm,"K",j+4)
        if CFG["late"] and i==CFG["ie"]: special(i1_e,vm)
        if CFG["wop"]==2 and i>=CFG["wo0"] and (i-CFG["wo0"])%CFG["wos"]==0 and (i-CFG["wo0"])//CFG["wos"]<14: wodma((i-CFG["wo0"])//CFG["wos"],vm)
        if i==CFG["f6"]: f6(vm)
        if i==CFG["p3"]: vm.issue("p3",PL3)
        if i==30:
            vm.drop_sp(); vm.wait("p3"); spin(a,PC3,PL3)
        for x in seq[11:17]: a(x)
        if i>0: pv(i-1,1)
        for x in seq[17:23]: a(x)
    a("s_nop 0"); a(c(NT-1,7)); a("s_nop 1")
    pv(NT-1,0); pv(NT-1,1)
    a("L_TAIL:")
    stamp(a,8)
    def red_write(B,rank,dmul,dadd,base):
        for g in range(4):
            L=lab("R"); E=lab("R")
            a(f"s_sub_u32 s34, s{rank}, {g+1}\ns_and_b32 s34, s34, 3\ns_cmp_eq_u32 s34, 3\ns_cbranch_scc1 {L}")
            a(f"s_lshl_b32 s34, s34, 11\ns_mul_i32 s35, s{dadd}, 6144\ns_add_u32 s34, s34, s35\ns_add_u32 s34, s34, {base+g*dmul*6144}\nv_add_u32 v10, s34, v8")
            a(f"ds_write_b128 v10, {v(B+8*g,4)}\nds_write_b128 v10, {v(B+8*g+4,4)} offset:1024\ns_branch {E}\n{L}:")
            for r in range(8): a(f"v_mov_b32 v{96+r}, v{B+8*g+r}")
            a(f"{E}:")
    def red_read(base):
        a(f"s_mul_i32 s34, s31, 6144\ns_add_u32 s34, s34, {base}\nv_add_u32 v10, s34, v8")
        for q in range(6): a(f"ds_read_b128 {v(104+4*q,4)}, v10 offset:{q*1024}")
        a("s_waitcnt lgkmcnt(2)")
        for r in range(8): a(f"v_add_f32 v{96+r}, v{96+r}, v{104+r}")
        a("s_waitcnt lgkmcnt(0)")
        for r in range(8): a(f"v_add_f32 v{112+r}, v{112+r}, v{120+r}")
        for r in range(8): a(f"v_add_f32 v{96+r}, v{96+r}, v{112+r}")
    a("s_lshl_b32 s33, s61, 2\ns_lshr_b32 s32, s31, 1")
    a("v_lshrrev_b32 v6, 5, v1\nv_bfe_u32 v7, v1, 2, 2\nv_lshl_add_u32 v11, v6, 2, v7\nv_min_u32 v7, 2, v7\nv_mad_u32_u24 v12, v6, 3, v7\nv_add_u32 v12, 8, v12")
    a("v_bfe_u32 v5, v1, 4, 1\nv_lshlrev_b32 v5, 5, v5\nv_and_b32 v7, 3, v1\nv_lshl_add_u32 v5, v7, 3, v5\ns_mul_i32 s34, s32, 14336\ns_add_u32 s34, s34, %d\nv_add_u32 v5, s34, v5"%WOB)
    for m in range(2):
        for u in range(2):
            d=240+2*m+u
            if m: a(f"v_add_u32 v{11+u}, 14, v{11+u}")
            a(f"v_bfe_u32 v7, v{11+u}, 1, 1\nv_lshl_add_u32 v{d}, v{11+u}, 7, v5\nv_lshl_add_u32 v{d}, v7, 6, v{d}\nv_xor_b32 v{d+4}, 64, v{d}")
    red_write(64,60,1,33,EX)
    a("s_lshl_b32 s34, s53, 1\ns_add_u32 s34, s34, s57\ns_lshl_b32 s34, s34, 5\nv_and_b32 v5, 31, v1\nv_add_u32 v5, s34, v5\nv_mul_u32_u24 v5, 1792, v5\nv_lshl_add_u32 v248, v6, 4, v5")
    a("s_lshl_b32 s70, s54, 7\ns_lshl_b32 s34, s32, 5\ns_add_u32 s70, s70, s34\ns_add_u32 s71, s70, 896")
    srd(a,44,64,2048*896*2)
    ofr_addr(1)
    for x in ofr(1,144).split("\n"): vm.issue("of",x)
    a("s_waitcnt vmcnt(8) lgkmcnt(0)\ns_barrier")
    red_read(EX)
    a("v_rcp_f32 v11, v103\ns_nop 0")
    for r in range(7): a(f"v_mul_f32 v{96+r}, v{96+r}, v11")
    a(f"v_mov_b32 v103, {TAG}")
    for j in range(4): a(f"v_cvt_pk_bf16_f32 v{104+j}, v{96+2*j}, v{97+2*j}")
    vm.issue("oa","buffer_store_dwordx4 v[104:107], v8, s[24:27], s59 offen "+CFG["osf"])
    stamp(a,9)
    a("s_cmp_ge_u32 s30, 28\ns_cbranch_scc1 L_FIN")
    if CFG["stop"]=="ATT": a("s_branch L_FIN")
    def tagcmp(F):
        return (f"v_min3_u32 v11, v{F+3}, v{F+7}, v{F+11}\nv_min3_u32 v12, v{F+15}, v{F+19}, v{F+23}\nv_min3_u32 v11, v11, v{F+27}, v{F+31}\nv_min_u32 v11, v11, v12\n"
                f"v_cmp_gt_u32 s[48:49], s42, v11\ns_nop 0")
    def oproj(F):
        def rd(f,fs):
            hl,m=divmod(f,2)
            for nt in range(2):
                for u in range(2): a(f"ds_read_b64_tr_b16 {v(224+8*fs+4*nt+2*u,2)}, v{240+4*nt+2*m+u} offset:{hl*3584}")
        rd(0,0)
        return rd
    def oproj2(F,rd):
        for f in range(8):
            fs=f&1
            if f<7: rd(f+1,fs^1); a("s_waitcnt lgkmcnt(4)")
            else: a("s_waitcnt lgkmcnt(0)")
            a(mfma(32,224+8*fs,F+4*f,"0" if f==0 else None)); a(mfma(48,228+8*fs,F+4*f,"0" if f==0 else None))
    def ostore(so):
        for j in range(4): a(f"v_cvt_pk_bf16_f32 v{104+j}, v{96+2*j}, v{97+2*j}")
        a(f"s_nop 1\nv_permlane32_swap_b32 v104, v106\nv_permlane32_swap_b32 v105, v107\nbuffer_store_dwordx4 v[104:107], v248, s[44:47], s{so} offen {CFG.get('of2','nt')}")
    a(f"s_mov_b32 s42, {TAG}")
    rd=oproj(144)
    vm.wait("of"); spin(a,tagcmp(144),ofr(1,144))
    oproj2(144,rd)
    ofr_addr(0)
    for r in range(8): a(f"v_subrev_u32 v{240+r}, {WOB-WOA}, v{240+r}")
    a("s_barrier")
    red_write(32,32,2,57,EX)
    a(ofr(0,192))
    a("s_waitcnt lgkmcnt(0)\ns_barrier")
    red_read(EX); ostore(71)
    stamp(a,10)
    rd=oproj(192)
    a("s_waitcnt vmcnt(1)"); spin(a,tagcmp(192),ofr(0,192))
    stamp(a,11)
    oproj2(192,rd)
    a("s_nop 11")
    red_write(32,32,2,57,WOB)
    a("s_waitcnt lgkmcnt(0)\ns_barrier")
    red_read(WOB); ostore(70)
    a("L_FIN:")
    stamp_out(a,12)
    a("L_END:\ns_endpgm")
    a("L_SLOW:"); clr(VM(a)); a("s_waitcnt vmcnt(0)"); f6(None)
    if CFG["wop"]==2:
        for k in range(14): wodma(k,None)
    if CFG["late"]: special(i1_e,None)
    a("L_S1:\nv_mov_b32 v10, 0xff800000\nv_mov_b32 v11, 0xff800000\ns_mov_b32 s43, 0\nL_S2:\ns_lshl_b32 s42, s43, 15\ns_xor_b32 s42, s42, s70")
    a(f"buffer_load_dwordx4 v[192:195], v8, s[24:27], s42 offen sc1\nbuffer_load_dwordx4 v[196:199], v8, s[24:27], s42 offen offset:1024 sc1\ns_waitcnt vmcnt(0)")
    for qb in range(2):
        a(mfma(S[qb],192,Q[qb],"0")); a(mfma(S[qb],196,Q[qb]+4))
    a("s_nop 15")
    for qb in range(2):
        for r in range(0,16,2): a(f"v_max3_f32 v{10+qb}, v{10+qb}, v{S[qb]+r}, v{S[qb]+r+1}")
    a("s_add_u32 s43, s43, 1\ns_cmp_lg_u32 s43, 16\ns_cbranch_scc1 L_S2")
    a("v_mov_b32 v14, v10\nv_mov_b32 v15, v11\ns_nop 1\nv_permlane32_swap_b32 v10, v14\nv_permlane32_swap_b32 v11, v15")
    a("v_max_f32 v10, v10, v14\nv_max_f32 v11, v11, v15")
    a(f"s_barrier\ns_lshl_b32 s34, s31, 9\ns_add_u32 s34, s34, {EX}\nv_add_u32 v12, s34, v13\nds_write_b32 v12, v10\nds_write_b32 v12, v11 offset:256")
    a(f"s_lshl_b32 s34, s61, 11\ns_add_u32 s34, s34, {EX}\nv_add_u32 v12, s34, v13\ns_waitcnt lgkmcnt(0)\ns_barrier")
    for k in range(4): a(f"ds_read_b32 v{192+k}, v12 offset:{k*512}\nds_read_b32 v{196+k}, v12 offset:{k*512+256}")
    a("s_waitcnt lgkmcnt(0)\ns_barrier")
    for qb in range(2):
        b=192+4*qb
        a(f"v_max3_f32 v{b}, v{b}, v{b+1}, v{b+2}\nv_max_f32 v{10+qb}, v{b}, v{b+3}")
    for r in range(64,96): a(f"v_mov_b32 v{r}, 0")
    a("s_mov_b32 s43, 0\nL_S3:\ns_lshl_b32 s42, s43, 15\ns_xor_b32 s42, s42, s70\ns_lshl_b32 s37, s43, 11\ns_xor_b32 s37, s37, s71")
    a(f"buffer_load_dwordx4 v[192:195], v8, s[24:27], s42 offen sc1\nbuffer_load_dwordx4 v[196:199], v8, s[24:27], s42 offen offset:1024 sc1")
    a(f"buffer_load_dwordx4 v[200:203], v5, s[24:27], s37 offen sc1\nbuffer_load_dwordx4 v[204:207], v5, s[24:27], s37 offen offset:1024 sc1\ns_waitcnt vmcnt(0)")
    for qb in range(2):
        a(mfma(S[qb],192,Q[qb],"0")); a(mfma(S[qb],196,Q[qb]+4))
    a("s_nop 15")
    for qb in range(2):
        for r in range(16): a(f"v_sub_f32 v{S[qb]+r}, v{S[qb]+r}, v{10+qb}")
        for r in range(16): a(e(qb,r))
        a("s_nop 0")
        for j in range(8): a(c(qb,j))
    a("s_nop 1")
    for qb in range(2):
        a(mfma(O[qb],200,P[qb])); a(mfma(O[qb],204,P[qb]+4))
    a("s_add_u32 s43, s43, 1\ns_cmp_lg_u32 s43, 16\ns_cbranch_scc1 L_S3")
    a("s_cmp_lt_u32 s31, 4\ns_cbranch_scc0 L_S4")
    i2_a(None); i2_b(None); i2_c(None); a("s_nop 15"); i2_d(None)
    a("L_S4:"); a(PL3); a("s_waitcnt vmcnt(0)"); spin(a,PC3,PL3); a("s_branch L_TAIL\nL_CEND:")
    return a
def emit(path):
    uid[0]=0
    a=gen(); N="concat_heads__softmax_full_mha__linear_attn_block__prompt_kernel"
    for e_ in check(a.lines,"fused"): print("HAZARD",e_)
    hdr="; generated by work/gen/fused.py (hand-written generator)\n; @launch grid=(256,1,1) block=(512,1,1) lds=163840\n"
    kd=f""".section .rodata,"a"
.p2align 6
.amdhsa_kernel {N}
  .amdhsa_next_free_vgpr 256
  .amdhsa_next_free_sgpr 102
  .amdhsa_accum_offset 256
  .amdhsa_group_segment_fixed_size 0
  .amdhsa_kernarg_size 72
  .amdhsa_user_sgpr_count 2
  .amdhsa_user_sgpr_kernarg_segment_ptr 1
  .amdhsa_system_sgpr_workgroup_id_x 1
.end_amdhsa_kernel
"""
    open(path,"w").write(hdr+'.amdgcn_target "amdgcn-amd-amdhsa--gfx950"\n.text\n'+a.text()+kd)
if __name__=="__main__":
    if "--instr" in sys.argv: INSTR=True
    for x in sys.argv[2:]:
        if "=" in x:
            k,val=x.split("="); CFG[k]=eval(val)
    emit(sys.argv[1])
```
